```python
import torch

def _softmax(x, axis=-1):
    return torch.softmax(x, dim=axis)
def _gelu(x):
    return torch.nn.functional.gelu(x, approximate="tanh")
def _silu(x):
    return torch.nn.functional.silu(x)
def _sigmoid(x):
    return torch.sigmoid(x)
def _layernorm(x, axis=-1, eps=1e-5):
    m = x.mean(dim=axis, keepdim=True)
    v = x.var(dim=axis, keepdim=True, unbiased=False)
    return (x - m) / torch.sqrt(v + eps)
def _scatter_add(tgt, idx, src, axis=0):
    return tgt.clone().index_add_(axis, idx, src)
def _segment_sum(src, seg, n):
    out = torch.zeros((n,) + src.shape[1:], dtype=src.dtype)
    return out.index_add_(0, seg, src)
def _pad(x, pw):
    flat = tuple(v for pair in reversed(pw) for v in pair)
    return torch.nn.functional.pad(x, flat)

kernel_name = 'standalone__gqa_softmax__near_ridge'

def setup_inputs():

    _w = (lambda a: (lambda t: t.to(torch.bfloat16) if t.is_floating_point() else t)(torch.as_tensor(a)))
    B, Hq, Hkv, Sq, Sk, D = 8, 32, 4, 48, 2048, 128
    return {
        "q": _w((lambda *s: torch.randn(*s, dtype=torch.bfloat16) * 0.8)(B, Hq, Sq, D)),
        "k": _w((lambda *s: torch.randn(*s, dtype=torch.bfloat16) * 0.8)(B, Hkv, Sk, D)),
        "v": _w((lambda *s: torch.randn(*s, dtype=torch.bfloat16) * 0.05)(B, Hkv, Sk, D)),
    }

def reference(q, k, v):
    B, Hq, Sq, D = q.shape
    Hkv = k.shape[1]
    rep = Hq // Hkv
    k = (lambda x, n, axis: torch.repeat_interleave(x, n, dim=axis))(k, rep, axis=1)
    v = (lambda x, n, axis: torch.repeat_interleave(x, n, dim=axis))(v, rep, axis=1)
    scale = D ** -0.5
    scores = torch.einsum("bhqd,bhkd->bhqk", q, k) * scale
    p = _softmax(scores, axis=-1)
    return torch.einsum("bhqk,bhkd->bhqd", p, v)
```

```python
import sys

out = []
def e(s=""):
    out.append(s)

O0 = 160
Q0 = 112
K0 = 80
S0 = 56
P0 = 44
F0 = 28
VT = 20
V_KOFF = 1
V_E = 2
V_O = 3
V_MC = 4
V_L = 7
V_T0 = 10
def Ot(dt, t): return O0 + (dt*3+t)*4
def Qf(t, s): return Q0 + (t*4+s)*4
def Kf(kt, s): return K0 + (kt*4+s)*4
def St(kt, t): return S0 + (kt*3+t)*4
def Pf(t): return P0 + t*4
def r4(b): return f"v[{b}:{b+3}]"
def r2(b): return f"v[{b}:{b+1}]"

sQ, sK, sV, sO = 12, 16, 20, 24
S_W = 28
S_KOFF = 29
S_VOFF = 30
S_C = 31
S_LDS = 32
S_IT = 33
S_T0, S_T1, S_T2 = 34, 35, 36

LDS_ML = 131072

import math
C = (128 ** -0.5) * math.log2(math.e)
import struct
def fbits(f): return "0x%08x" % struct.unpack("<I", struct.pack("<f", f))[0]

e("; @launch grid=(256,1,1) block=(512,1,1) lds=139264")
e('.amdgcn_target "amdgcn-amd-amdhsa--gfx950"')
e(".text")
e(".globl standalone__gqa_softmax__near_ridge_kernel")
e(".p2align 8")
e(".type standalone__gqa_softmax__near_ridge_kernel,@function")
e("standalone__gqa_softmax__near_ridge_kernel:")
e("  s_cmp_ge_u32 s2, 256")
e("  s_cbranch_scc1 L_end")
e("  s_load_dwordx8 s[4:11], s[0:1], 0")
e("  v_and_b32 v10, 63, v0")
e("  v_lshrrev_b32 v11, 6, v0")
e("  s_nop 0")
e(f"  v_readfirstlane_b32 s{S_W}, v11")
e("  s_and_b32 s37, s2, 7")
e("  s_lshr_b32 s38, s2, 3")
e("  s_lshr_b32 s39, s38, 3")
e("  s_lshl_b32 s37, s37, 2")
e("  s_add_u32 s37, s37, s39")
e("  s_and_b32 s38, s38, 7")
e("  s_lshl_b32 s39, s37, 3")
e("  s_add_u32 s39, s39, s38")
e("  s_mul_i32 s40, s39, 12288")
e("  s_lshl_b32 s41, s37, 19")
e("  v_and_b32 v12, 15, v10")
e("  v_lshrrev_b32 v13, 4, v10")
e(f"  v_lshlrev_b32 v{V_KOFF}, 8, v12")
e(f"  v_lshl_add_u32 v{V_KOFF}, v13, 4, v{V_KOFF}")
e("  v_lshlrev_b32 v14, 1, v13")
e("  v_xor_b32 v15, v12, v14")
e("  v_lshlrev_b32 v16, 8, v13")
e(f"  v_lshl_add_u32 v{V_E}, v15, 4, v16")
e("  v_xor_b32 v15, 8, v15")
e(f"  v_lshl_add_u32 v{V_O}, v15, 4, v16")
e("  v_lshrrev_b32 v14, 2, v12")
e("  v_and_b32 v15, 3, v12")
e("  v_lshl_add_u32 v16, v13, 2, v14")
e("  v_and_b32 v17, 7, v16")
e("  v_lshlrev_b32 v18, 8, v16")
e("  v_lshrrev_b32 v19, 1, v15")
e("  v_lshl_add_u32 v18, v19, 4, v18")
e("  v_and_b32 v19, 1, v15")
e("  v_lshl_add_u32 v18, v19, 3, v18")
e(f"  s_lshl_b32 s{S_LDS}, s{S_W}, 14")
e(f"  v_add_u32 v18, s{S_LDS}, v18")
for dt in range(8):
    e(f"  v_xor_b32 v19, {dt}, v17")
    e(f"  v_lshl_add_u32 v{VT+dt}, v19, 5, v18")
e("  s_waitcnt lgkmcnt(0)")
e(f"  s_add_u32 s{sQ}, s4, s40"); e(f"  s_addc_u32 s{sQ+1}, s5, 0"); e(f"  s_mov_b32 s{sQ+2}, 12288"); e(f"  s_mov_b32 s{sQ+3}, 0x00020000")
e(f"  s_add_u32 s{sK}, s6, s41"); e(f"  s_addc_u32 s{sK+1}, s7, 0"); e(f"  s_mov_b32 s{sK+2}, 524288"); e(f"  s_mov_b32 s{sK+3}, 0x00020000")
e(f"  s_add_u32 s{sV}, s8, s41"); e(f"  s_addc_u32 s{sV+1}, s9, 0"); e(f"  s_mov_b32 s{sV+2}, 524288"); e(f"  s_mov_b32 s{sV+3}, 0x00020000")
e(f"  s_add_u32 s{sO}, s10, s40"); e(f"  s_addc_u32 s{sO+1}, s11, 0"); e(f"  s_mov_b32 s{sO+2}, 12288"); e(f"  s_mov_b32 s{sO+3}, 0x00020000")
e(f"  s_lshl_b32 s{S_KOFF}, s{S_W}, 16")
e(f"  s_mov_b32 s{S_VOFF}, s{S_KOFF}")
e(f"  s_mov_b32 s{S_C}, {fbits(C)}")

def load_K():
    e(f"  s_add_u32 s{S_T0}, s{S_KOFF}, 4096")
    for kt in range(2):
        so = S_KOFF if kt == 0 else S_T0
        for s in range(4):
            e(f"  buffer_load_dwordx4 {r4(Kf(kt,s))}, v{V_KOFF}, s[{sK}:{sK+3}], s{so} offen offset:{s*64}")
    e(f"  s_add_u32 s{S_KOFF}, s{S_KOFF}, 8192")

def load_V(buf):
    e(f"  s_add_u32 s{S_T1}, s{S_LDS}, {buf*8192}")
    e(f"  s_mov_b32 m0, s{S_T1}")
    e(f"  s_add_u32 s{S_T0}, s{S_VOFF}, 4096")
    for j in range(4):
        v = V_E if j % 2 == 0 else V_O
        e(f"  buffer_load_dwordx4 v{v}, s[{sV}:{sV+3}], s{S_VOFF} offen offset:{j*1024} lds")
    e(f"  s_add_u32 s{S_T1}, s{S_T1}, 4096")
    e(f"  s_mov_b32 m0, s{S_T1}")
    e("  s_nop 0")
    for j in range(4):
        v = V_E if j % 2 == 0 else V_O
        e(f"  buffer_load_dwordx4 v{v}, s[{sV}:{sV+3}], s{S_T0} offen offset:{j*1024} lds")
    e(f"  s_add_u32 s{S_VOFF}, s{S_VOFF}, 8192")

load_K()
load_V(0)
load_V(1)
for t in range(3):
    e(f"  s_movk_i32 s{S_T0}, {t*4096}")
    for s in range(4):
        e(f"  buffer_load_dwordx4 {r4(Qf(t,s))}, v{V_KOFF}, s[{sQ}:{sQ+3}], s{S_T0} offen offset:{s*64}")
for i in range(96):
    e(f"  v_mov_b32 v{O0+i}, 0")
for t in range(3):
    e(f"  v_mov_b32 v{V_MC+t}, 0xff800000")
    e(f"  v_mov_b32 v{V_L+t}, 0")
e(f"  s_mov_b32 s{S_IT}, 0")
e("  s_waitcnt vmcnt(0)")

def iteration(buf, tag):
    e(f"  s_cmp_lt_u32 s{S_IT}, 7")
    e(f"  s_cbranch_scc1 L_w8{tag}")
    e("  s_waitcnt vmcnt(0)")
    e(f"L_w8{tag}:")
    e("  s_waitcnt vmcnt(8)")
    for s in range(4):
        for kt in range(2):
            for t in range(3):
                c = "0" if s == 0 else r4(St(kt,t))
                e(f"  v_mfma_f32_16x16x32_bf16 {r4(St(kt,t))}, {r4(Kf(kt,s))}, {r4(Qf(t,s))}, {c}")
    e(f"  s_cmp_ge_u32 s{S_IT}, 7")
    e(f"  s_cbranch_scc1 L_skipK{tag}")
    load_K()
    e(f"L_skipK{tag}:")
    e("  s_nop 7")
    e(f"L_redo{tag}:")
    for kt in range(2):
        for t in range(3):
            for r in range(4):
                e(f"  v_fma_f32 v{P0+0}, v{St(kt,t)+r}, s{S_C}, -v{V_MC+t}") if False else None
    first = True
    for t in range(3):
        for kt in range(2):
            b = St(kt,t)
            e(f"  v_max3_f32 v{V_T0+kt}, v{b}, v{b+1}, v{b+2}")
            e(f"  v_max_f32 v{V_T0+kt}, v{V_T0+kt}, v{b+3}")
        e(f"  v_max_f32 v{V_T0+2+t}, v{V_T0}, v{V_T0+1}")
        e(f"  v_fma_f32 v{V_T0+5+t}, v{V_T0+2+t}, s{S_C}, -v{V_MC+t}")
    e(f"  v_max3_f32 v{V_T0}, v{V_T0+5}, v{V_T0+6}, v{V_T0+7}")
    e(f"  v_cmp_lt_f32 vcc, 0x41000000, v{V_T0}")
    e(f"  s_cbranch_vccz L_fast{tag}")
    for t in range(3):
        a = V_T0+2+t
        e(f"  v_mov_b32 v{V_T0}, v{a}")
        e("  s_nop 1")
        e(f"  v_permlane32_swap_b32 v{a}, v{V_T0}")
        e(f"  v_max_f32 v{a}, v{a}, v{V_T0}")
        e(f"  v_mov_b32 v{V_T0}, v{a}")
        e("  s_nop 1")
        e(f"  v_permlane16_swap_b32 v{a}, v{V_T0}")
        e(f"  v_max_f32 v{a}, v{a}, v{V_T0}")
        e(f"  v_mul_f32 v{a}, s{S_C}, v{a}")
        e(f"  v_max_f32 v{a}, v{a}, v{V_MC+t}")
        e(f"  v_sub_f32 v{V_T0}, v{V_MC+t}, v{a}")
        e(f"  v_exp_f32 v{V_T0}, v{V_T0}")
        e(f"  v_mov_b32 v{V_MC+t}, v{a}")
        e(f"  v_mul_f32 v{V_L+t}, v{V_L+t}, v{V_T0}")
        for dt in range(8):
            for r in range(4):
                e(f"  v_mul_f32 v{Ot(dt,t)+r}, v{Ot(dt,t)+r}, v{V_T0}")
    e(f"L_fast{tag}:")
    e("  s_waitcnt vmcnt(16)")
    for dt in range(4):
        for kh in range(2):
            e(f"  ds_read_b64_tr_b16 {r2(F0+dt*4+kh*2)}, v{VT+dt} offset:{buf*8192+kh*4096}")
    for t in range(3):
        for kt in range(2):
            b = St(kt,t)
            for r in range(4):
                e(f"  v_fma_f32 v{b+r}, v{b+r}, s{S_C}, -v{V_MC+t}")
            for r in range(4):
                e(f"  v_exp_f32 v{b+r}, v{b+r}")
        e("  s_nop 0")
        b0, b1 = St(0,t), St(1,t)
        e(f"  v_add_f32 v{V_T0}, v{b0}, v{b0+1}")
        e(f"  v_add_f32 v{V_T0+1}, v{b0+2}, v{b0+3}")
        e(f"  v_add_f32 v{V_T0+2}, v{b1}, v{b1+1}")
        e(f"  v_add_f32 v{V_T0+3}, v{b1+2}, v{b1+3}")
        e(f"  v_add_f32 v{V_T0}, v{V_T0}, v{V_T0+1}")
        e(f"  v_add_f32 v{V_T0+2}, v{V_T0+2}, v{V_T0+3}")
        e(f"  v_add_f32 v{V_T0}, v{V_T0}, v{V_T0+2}")
        e(f"  v_add_f32 v{V_L+t}, v{V_L+t}, v{V_T0}")
        e(f"  v_cvt_pk_bf16_f32 v{Pf(t)}, v{b0}, v{b0+1}")
        e(f"  v_cvt_pk_bf16_f32 v{Pf(t)+1}, v{b0+2}, v{b0+3}")
        e(f"  v_cvt_pk_bf16_f32 v{Pf(t)+2}, v{b1}, v{b1+1}")
        e(f"  v_cvt_pk_bf16_f32 v{Pf(t)+3}, v{b1+2}, v{b1+3}")
    e("  s_nop 1")
    for dt in range(8):
        fb = F0 + (dt % 4) * 4
        if dt < 4:
            n_after = (3 - dt) * 2 + dt * 2
        else:
            n_after = (7 - dt) * 2
        e(f"  s_waitcnt lgkmcnt({n_after})")
        for t in range(3):
            e(f"  v_mfma_f32_16x16x32_bf16 {r4(Ot(dt,t))}, {r4(fb)}, {r4(Pf(t))}, {r4(Ot(dt,t))}")
        if dt + 4 < 8:
            for kh in range(2):
                e(f"  ds_read_b64_tr_b16 {r2(fb+kh*2)}, v{VT+dt+4} offset:{buf*8192+kh*4096}")
    e(f"  s_cmp_ge_u32 s{S_IT}, 6")
    e(f"  s_cbranch_scc1 L_skipV{tag}")
    load_V(buf)
    e(f"L_skipV{tag}:")
    e(f"  s_add_u32 s{S_IT}, s{S_IT}, 1")

e("L_loop:")
iteration(0, "a")
iteration(1, "b")
e(f"  s_cmp_lt_u32 s{S_IT}, 8")
e("  s_cbranch_scc1 L_loop")

e("  s_waitcnt vmcnt(0) lgkmcnt(0)")
for t in range(3):
    a = V_L + t
    e(f"  v_mov_b32 v{V_T0}, v{a}")
    e("  s_nop 1")
    e(f"  v_permlane32_swap_b32 v{a}, v{V_T0}")
    e(f"  v_add_f32 v{a}, v{a}, v{V_T0}")
    e(f"  v_mov_b32 v{V_T0}, v{a}")
    e("  s_nop 1")
    e(f"  v_permlane16_swap_b32 v{a}, v{V_T0}")
    e(f"  v_add_f32 v{a}, v{a}, v{V_T0}")
e("  v_and_b32 v12, 15, v0")
e("  v_lshlrev_b32 v13, 5, v12")
e(f"  s_lshl_b32 s{S_T0}, s{S_W}, 2")
e(f"  s_add_u32 s{S_T0}, s{S_T0}, {LDS_ML}")
e(f"  v_add_u32 v14, s{S_T0}, v13")
for t in range(3):
    e(f"  ds_write_b32 v14, v{V_MC+t} offset:{t*512}")
    e(f"  ds_write_b32 v14, v{V_L+t} offset:{1536+t*512}")
e("  s_waitcnt lgkmcnt(0)")
e("  s_barrier")
e(f"  v_add_u32 v13, {LDS_ML}, v13")
for t in range(3):
    e(f"  ds_read_b128 v[28:31], v13 offset:{t*512}")
    e(f"  ds_read_b128 v[32:35], v13 offset:{t*512+16}")
    e(f"  ds_read_b128 v[36:39], v13 offset:{1536+t*512}")
    e(f"  ds_read_b128 v[40:43], v13 offset:{1536+t*512+16}")
    e("  s_waitcnt lgkmcnt(0)")
    e("  v_max3_f32 v10, v28, v29, v30")
    e("  v_max3_f32 v10, v10, v31, v32")
    e("  v_max3_f32 v10, v10, v33, v34")
    e("  v_max_f32 v10, v10, v35")
    for k in range(8):
        e(f"  v_sub_f32 v{28+k}, v{28+k}, v10")
    for k in range(8):
        e(f"  v_exp_f32 v{28+k}, v{28+k}")
    e("  s_nop 0")
    e("  v_mul_f32 v11, v28, v36")
    for k in range(1, 8):
        e(f"  v_fmac_f32 v11, v{28+k}, v{36+k}")
    e("  v_rcp_f32 v11, v11")
    e(f"  v_sub_f32 v10, v{V_MC+t}, v10")
    e("  v_exp_f32 v10, v10")
    e("  s_nop 0")
    e("  v_mul_f32 v10, v10, v11")
    for dt in range(8):
        for r in range(4):
            e(f"  v_mul_f32 v{Ot(dt,t)+r}, v{Ot(dt,t)+r}, v10")
e("  v_and_b32 v10, 63, v0")
e("  v_lshlrev_b32 v10, 4, v10")
e(f"  s_mul_i32 s{S_T0}, s{S_W}, 12288")
e(f"  v_add_u32 v11, s{S_T0}, v10")
e("  v_and_b32 v12, 15, v0")
e("  v_bfe_u32 v13, v0, 4, 2")
e("  v_lshlrev_b32 v12, 8, v12")
e("  v_lshl_add_u32 v12, v13, 3, v12")
for rnd in range(2):
    e("  s_barrier")
    for k in range(12):
        dt = rnd*4 + k//3; t = k % 3
        e(f"  ds_write_b128 v11, {r4(Ot(dt,t))} offset:{k*1024}")
    e("  s_waitcnt lgkmcnt(0)")
    e("  s_barrier")
    for slot in range(2):
        lab = f"L_ep{rnd}{slot}"
        if slot == 0:
            if rnd == 0:
                e(f"  s_cmp_ge_u32 s{S_W}, 4")
                e(f"  s_cbranch_scc1 {lab}")
                e(f"  s_mov_b32 s{S_T1}, s{S_W}")
            else:
                e(f"  s_cmp_lt_u32 s{S_W}, 4")
                e(f"  s_cbranch_scc1 {lab}")
                e(f"  s_sub_u32 s{S_T1}, s{S_W}, 4")
        else:
            e(f"  s_add_u32 s{S_T1}, s{S_W}, 4")
        e(f"  s_lshl_b32 s{S_T2}, s{S_T1}, 10")
        e(f"  v_add_u32 v13, s{S_T2}, v10")
        e("  v_add_u32 v14, 49152, v13")
        for w in range(8):
            e(f"  ds_read_b128 v[{28+w*4}:{31+w*4}], v{13 if w<4 else 14} offset:{(w%4)*12288}")
        e("  s_waitcnt lgkmcnt(0)")
        for w in range(1, 8):
            for r in range(4):
                e(f"  v_add_f32 v{28+r}, v{28+r}, v{28+w*4+r}")
        e("  v_cvt_pk_bf16_f32 v28, v28, v29")
        e("  v_cvt_pk_bf16_f32 v29, v30, v31")
        e(f"  s_mul_hi_u32 s{S_T0}, s{S_T1}, 0x55555556")
        e(f"  s_mul_i32 s{S_T2}, s{S_T0}, 3")
        e(f"  s_sub_u32 s{S_T2}, s{S_T1}, s{S_T2}")
        e(f"  s_lshl_b32 s{S_T2}, s{S_T2}, 12")
        e(f"  s_lshl_b32 s{S_T0}, s{S_T0}, 5")
        e(f"  s_add_u32 s{S_T2}, s{S_T2}, s{S_T0}")
        e(f"  buffer_store_dwordx2 v[28:29], v12, s[{sO}:{sO+3}], s{S_T2} offen offset:{rnd*128}")
        e(f"{lab}:")
e("L_end:")
e("  s_endpgm")
e('.section .rodata,"a"')
e(".p2align 6")
e(".amdhsa_kernel standalone__gqa_softmax__near_ridge_kernel")
e("  .amdhsa_next_free_vgpr 256")
e("  .amdhsa_next_free_sgpr 48")
e("  .amdhsa_accum_offset 256")
e("  .amdhsa_group_segment_fixed_size 0")
e("  .amdhsa_kernarg_size 48")
e("  .amdhsa_user_sgpr_count 2")
e("  .amdhsa_user_sgpr_kernarg_segment_ptr 1")
e("  .amdhsa_system_sgpr_workgroup_id_x 1")
e(".end_amdhsa_kernel")

hdr = open("standalone__gqa_softmax__near_ridge.s.ref").read().split("; Override")[0]
open(sys.argv[1], "w").write(hdr + "\n".join(out) + "\n")
```

```python
import sys, os, math, struct
FL = os.environ.get('FL', '')
NOEPI = os.environ.get('NOEPI'); NOLOOP = os.environ.get('NOLOOP')
out = []
def e(s=""): out.append(s)

O0, Q0, K0, S0, P0, F0 = 160, 112, 80, 56, 44, 32
NF = 3
V_E, V_O = 1, 2
KD = 3
KR = 7
VT = 11
V_MC = 19
V_L = 22
T = K0
def Ot(dt, t): return O0 + (dt*3+t)*4
def Qf(t, s): return Q0 + (t*4+s)*4
def Kf(kt, s): return K0 + (kt*4+s)*4
def St(kt, t): return S0 + (kt*3+t)*4
def Pf(t): return P0 + t*4
def r4(b): return f"v[{b}:{b+3}]"
def r2(b): return f"v[{b}:{b+1}]"
sQ, sK, sV, sO = 12, 16, 20, 24
S_W, S_H, S_C, S_LDS, S_IT, S_WOFF = 28, 29, 31, 32, 33, 30
S_T0, S_T1, S_T2, S_T3 = 34, 35, 36, 42
LDS_Q = 131072
LDS_ML = 131072 + 12288
C = (128 ** -0.5) * math.log2(math.e)
def fbits(f): return "0x%08x" % struct.unpack("<I", struct.pack("<f", f))[0]

e("; @launch grid=(256,1,1) block=(512,1,1) lds=147456")
e('.amdgcn_target "amdgcn-amd-amdhsa--gfx950"')
e(".text")
e(".globl standalone__gqa_softmax__near_ridge_kernel")
e(".p2align 8")
e(".type standalone__gqa_softmax__near_ridge_kernel,@function")
e("standalone__gqa_softmax__near_ridge_kernel:")
e("  s_cmp_ge_u32 s2, 256")
e("  s_cbranch_scc1 L_end")
e("  s_load_dwordx8 s[4:11], s[0:1], 0")
e("  v_and_b32 v40, 63, v0")
e("  v_lshrrev_b32 v41, 6, v0")
e("  s_nop 0")
e(f"  v_readfirstlane_b32 s{S_W}, v41")
e("  s_and_b32 s37, s2, 7")
e("  s_lshr_b32 s38, s2, 3")
e("  s_lshr_b32 s39, s38, 3")
e("  s_lshl_b32 s37, s37, 2")
e("  s_add_u32 s37, s37, s39")
e(f"  s_and_b32 s{S_H}, s38, 7")
e("  s_lshl_b32 s39, s37, 3")
e(f"  s_add_u32 s39, s39, s{S_H}")
e("  s_mul_i32 s40, s39, 12288")
e("  s_lshl_b32 s41, s37, 19")
e("  v_and_b32 v42, 15, v40")
e("  v_lshrrev_b32 v43, 4, v40")
e("  v_lshlrev_b32 v44, 1, v43")
e("  v_xor_b32 v45, v42, v44")
e("  v_lshlrev_b32 v46, 8, v43")
e(f"  v_lshl_add_u32 v{V_E}, v45, 4, v46")
e("  v_xor_b32 v45, 8, v45")
e(f"  v_lshl_add_u32 v{V_O}, v45, 4, v46")
for jj in range(4):
    e(f"  v_add_u32 v45, {4*jj}, v43")
    e("  v_xor_b32 v45, v42, v45")
    e(f"  v_lshl_add_u32 v{KD+jj}, v45, 4, v46")
e(f"  s_lshl_b32 s{S_LDS}, s{S_W}, 14")
e("  v_lshlrev_b32 v46, 8, v42")
e(f"  v_add_u32 v47, s{S_LDS}, v46")
for s in range(4):
    e(f"  v_add_u32 v45, {4*s}, v43")
    e("  v_xor_b32 v45, v42, v45")
    e(f"  v_lshl_add_u32 v{KR+s}, v45, 4, v47")
e("  v_lshrrev_b32 v44, 2, v42")
e("  v_and_b32 v45, 3, v42")
e("  v_lshl_add_u32 v46, v43, 2, v44")
e("  v_and_b32 v47, 7, v46")
e("  v_lshlrev_b32 v48, 8, v46")
e("  v_lshrrev_b32 v49, 1, v45")
e("  v_lshl_add_u32 v48, v49, 4, v48")
e("  v_and_b32 v49, 1, v45")
e("  v_lshl_add_u32 v48, v49, 3, v48")
e(f"  s_add_u32 s{S_T0}, s{S_LDS}, 8192")
e(f"  v_add_u32 v48, s{S_T0}, v48")
for dt in range(8):
    e(f"  v_xor_b32 v49, {dt}, v47")
    e(f"  v_lshl_add_u32 v{VT+dt}, v49, 5, v48")
e("  s_waitcnt lgkmcnt(0)")
e(f"  s_add_u32 s{sQ}, s4, s40"); e(f"  s_addc_u32 s{sQ+1}, s5, 0"); e(f"  s_mov_b32 s{sQ+2}, 12288"); e(f"  s_mov_b32 s{sQ+3}, 0x00020000")
e(f"  s_add_u32 s{sK}, s6, s41"); e(f"  s_addc_u32 s{sK+1}, s7, 0"); e(f"  s_mov_b32 s{sK+2}, 524288"); e(f"  s_mov_b32 s{sK+3}, 0x00020000")
e(f"  s_add_u32 s{sV}, s8, s41"); e(f"  s_addc_u32 s{sV+1}, s9, 0"); e(f"  s_mov_b32 s{sV+2}, 524288"); e(f"  s_mov_b32 s{sV+3}, 0x00020000")
e(f"  s_add_u32 s{sO}, s10, s40"); e(f"  s_addc_u32 s{sO+1}, s11, 0"); e(f"  s_mov_b32 s{sO+2}, 12288"); e(f"  s_mov_b32 s{sO+3}, 0x00020000")
e(f"  s_lshl_b32 s{S_WOFF}, s{S_W}, 16")
e(f"  s_mov_b32 s{S_C}, {fbits(C)}")

def tile_soff(delta):
    e(f"  s_add_u32 s{S_T3}, s{S_IT}, s{S_H}")
    if delta: e(f"  s_add_u32 s{S_T3}, s{S_T3}, {delta}")
    e(f"  s_and_b32 s{S_T3}, s{S_T3}, 7")
    e(f"  s_lshl_b32 s{S_T3}, s{S_T3}, 13")
    e(f"  s_add_u32 s{S_T3}, s{S_T3}, s{S_WOFF}")

def dma_tile(srd, ldsoff, vregs):
    e(f"  s_add_u32 s{S_T1}, s{S_LDS}, {ldsoff}")
    e(f"  s_mov_b32 m0, s{S_T1}")
    e(f"  s_add_u32 s{S_T0}, s{S_T3}, 4096")
    for j in range(4):
        e(f"  buffer_load_dwordx4 v{vregs[j % len(vregs)]}, s[{srd}:{srd+3}], s{S_T3} offen offset:{j*1024} {FL} lds")
    e(f"  s_add_u32 s{S_T1}, s{S_T1}, 4096")
    e(f"  s_mov_b32 m0, s{S_T1}")
    e("  s_nop 0")
    for j in range(4):
        e(f"  buffer_load_dwordx4 v{vregs[j % len(vregs)]}, s[{srd}:{srd+3}], s{S_T0} offen offset:{j*1024} {FL} lds")
def load_K(delta):
    tile_soff(delta); dma_tile(sK, 0, [KD, KD+1, KD+2, KD+3])
def load_V(delta):
    tile_soff(delta); dma_tile(sV, 8192, [V_E, V_O])

e(f"  s_mov_b32 s{S_IT}, 0")
load_K(0)
load_V(0)
e(f"  s_cmp_ge_u32 s{S_W}, 3")
e("  s_cbranch_scc1 L_noq")
e(f"  s_lshl_b32 s{S_T0}, s{S_W}, 12")
e(f"  s_add_u32 s{S_T1}, s{S_T0}, {LDS_Q}")
e(f"  s_mov_b32 m0, s{S_T1}")
e("  s_nop 0")
for j in range(4):
    e(f"  buffer_load_dwordx4 v{KD+j}, s[{sQ}:{sQ+3}], s{S_T0} offen offset:{j*1024} lds")
e("L_noq:")
for i in range(96):
    e(f"  v_mov_b32 v{O0+i}, 0")
for t in range(3):
    e(f"  v_mov_b32 v{V_MC+t}, 0xff800000")
    e(f"  v_mov_b32 v{V_L+t}, 0")
e(f"  s_sub_u32 s{S_T0}, {LDS_Q}, s{S_LDS}")
for s in range(4):
    e(f"  v_add_u32 v{40+s}, s{S_T0}, v{KR+s}")
e("  s_waitcnt vmcnt(0)")
e("  s_barrier")
for t in range(3):
    for s in range(4):
        e(f"  ds_read_b128 {r4(Qf(t,s))}, v{40+s} offset:{t*4096}")
e("  s_waitcnt lgkmcnt(0)")
if NOLOOP: e("  s_branch L_epi")

e("L_loop:")
e("  s_waitcnt vmcnt(8)")
for kt in range(2):
    for s in range(4):
        e(f"  ds_read_b128 {r4(Kf(kt,s))}, v{KR+s} offset:{kt*4096}")
e("  s_waitcnt lgkmcnt(0)")
e(f"  s_cmp_ge_u32 s{S_IT}, 7")
e("  s_cbranch_scc1 L_skipK")
load_K(1)
e("L_skipK:")
for s in range(4):
    for kt in range(2):
        for t in range(3):
            c = "0" if s == 0 else r4(St(kt,t))
            e(f"  v_mfma_f32_16x16x32_bf16 {r4(St(kt,t))}, {r4(Kf(kt,s))}, {r4(Qf(t,s))}, {c}")
e("  s_nop 7")
for t in range(3):
    for kt in range(2):
        b = St(kt,t)
        e(f"  v_max3_f32 v{T+kt}, v{b}, v{b+1}, v{b+2}")
        e(f"  v_max_f32 v{T+kt}, v{T+kt}, v{b+3}")
    e(f"  v_max_f32 v{T+2+t}, v{T}, v{T+1}")
    e(f"  v_fma_f32 v{T+5+t}, v{T+2+t}, s{S_C}, -v{V_MC+t}")
e(f"  v_max3_f32 v{T}, v{T+5}, v{T+6}, v{T+7}")
e(f"  v_cmp_lt_f32 vcc, 0x41000000, v{T}")
e("  s_cbranch_vccz L_fast")
for t in range(3):
    a = T+2+t
    e(f"  v_mov_b32 v{T}, v{a}")
    e("  s_nop 1")
    e(f"  v_permlane32_swap_b32 v{a}, v{T}")
    e(f"  v_max_f32 v{a}, v{a}, v{T}")
    e(f"  v_mov_b32 v{T}, v{a}")
    e("  s_nop 1")
    e(f"  v_permlane16_swap_b32 v{a}, v{T}")
    e(f"  v_max_f32 v{a}, v{a}, v{T}")
    e(f"  v_mul_f32 v{a}, s{S_C}, v{a}")
    e(f"  v_max_f32 v{a}, v{a}, v{V_MC+t}")
    e(f"  v_sub_f32 v{T}, v{V_MC+t}, v{a}")
    e(f"  v_exp_f32 v{T}, v{T}")
    e(f"  v_mov_b32 v{V_MC+t}, v{a}")
    e(f"  v_mul_f32 v{V_L+t}, v{V_L+t}, v{T}")
    for dt in range(8):
        for r in range(4):
            e(f"  v_mul_f32 v{Ot(dt,t)+r}, v{Ot(dt,t)+r}, v{T}")
e("L_fast:")
e(f"  s_cmp_lt_u32 s{S_IT}, 7")
e("  s_cbranch_scc1 L_w8")
e("  s_waitcnt vmcnt(0)")
e("L_w8:")
e("  s_waitcnt vmcnt(8)")
for dt in range(NF):
    for kh in range(2):
        e(f"  ds_read_b64_tr_b16 {r2(F0+dt*4+kh*2)}, v{VT+dt} offset:{kh*4096}")
for t in range(3):
    for kt in range(2):
        b = St(kt,t)
        for r in range(4):
            e(f"  v_fma_f32 v{b+r}, v{b+r}, s{S_C}, -v{V_MC+t}")
        for r in range(4):
            e(f"  v_exp_f32 v{b+r}, v{b+r}")
    e("  s_nop 0")
    b0, b1 = St(0,t), St(1,t)
    e(f"  v_add_f32 v{T}, v{b0}, v{b0+1}")
    e(f"  v_add_f32 v{T+1}, v{b0+2}, v{b0+3}")
    e(f"  v_add_f32 v{T+2}, v{b1}, v{b1+1}")
    e(f"  v_add_f32 v{T+3}, v{b1+2}, v{b1+3}")
    e(f"  v_add_f32 v{T}, v{T}, v{T+1}")
    e(f"  v_add_f32 v{T+2}, v{T+2}, v{T+3}")
    e(f"  v_add_f32 v{T}, v{T}, v{T+2}")
    e(f"  v_add_f32 v{V_L+t}, v{V_L+t}, v{T}")
    e(f"  v_cvt_pk_bf16_f32 v{Pf(t)}, v{b0}, v{b0+1}")
    e(f"  v_cvt_pk_bf16_f32 v{Pf(t)+1}, v{b0+2}, v{b0+3}")
    e(f"  v_cvt_pk_bf16_f32 v{Pf(t)+2}, v{b1}, v{b1+1}")
    e(f"  v_cvt_pk_bf16_f32 v{Pf(t)+3}, v{b1+2}, v{b1+3}")
e("  s_nop 1")
issued = NF
for dt in range(8):
    fb = F0 + (dt % NF) * 4
    n_after = (issued - dt - 1) * 2
    e(f"  s_waitcnt lgkmcnt({n_after})")
    for t in range(3):
        e(f"  v_mfma_f32_16x16x32_bf16 {r4(Ot(dt,t))}, {r4(fb)}, {r4(Pf(t))}, {r4(Ot(dt,t))}")
    if issued < 8:
        for kh in range(2):
            e(f"  ds_read_b64_tr_b16 {r2(fb+kh*2)}, v{VT+issued} offset:{kh*4096}")
        issued += 1
e(f"  s_cmp_ge_u32 s{S_IT}, 7")
e("  s_cbranch_scc1 L_skipV")
load_V(1)
e("L_skipV:")
e(f"  s_add_u32 s{S_IT}, s{S_IT}, 1")
e(f"  s_cmp_lt_u32 s{S_IT}, 8")
e("  s_cbranch_scc1 L_loop")

e("L_epi:")
if NOEPI: e("  s_endpgm")
for t in range(3):
    a = V_L + t
    e(f"  v_mov_b32 v{T}, v{a}")
    e("  s_nop 1")
    e(f"  v_permlane32_swap_b32 v{a}, v{T}")
    e(f"  v_add_f32 v{a}, v{a}, v{T}")
    e(f"  v_mov_b32 v{T}, v{a}")
    e("  s_nop 1")
    e(f"  v_permlane16_swap_b32 v{a}, v{T}")
    e(f"  v_add_f32 v{a}, v{a}, v{T}")
e("  v_and_b32 v42, 15, v0")
e("  v_lshlrev_b32 v43, 5, v42")
e(f"  s_lshl_b32 s{S_T0}, s{S_W}, 2")
e(f"  s_add_u32 s{S_T0}, s{S_T0}, {LDS_ML}")
e(f"  v_add_u32 v44, s{S_T0}, v43")
for t in range(3):
    e(f"  ds_write_b32 v44, v{V_MC+t} offset:{t*512}")
    e(f"  ds_write_b32 v44, v{V_L+t} offset:{1536+t*512}")
e(f"  v_add_u32 v43, {LDS_ML}, v43")
e("  v_and_b32 v40, 63, v0")
e("  v_lshlrev_b32 v40, 4, v40")
e(f"  s_mul_i32 s{S_T0}, s{S_W}, 12288")
e(f"  v_add_u32 v41, s{S_T0}, v40")
e("  v_bfe_u32 v45, v0, 4, 2")
e("  v_lshlrev_b32 v42, 8, v42")
e("  v_lshl_add_u32 v42, v45, 3, v42")
e("  s_waitcnt lgkmcnt(0)")
for rnd in range(2):
    e("  s_barrier")
    for k in range(12):
        dt = rnd*4 + k//3; t = k % 3
        e(f"  ds_write_b128 v41, {r4(Ot(dt,t))} offset:{k*1024}")
    e("  s_waitcnt lgkmcnt(0)")
    e("  s_barrier")
    for slot in range(2):
        lab = f"L_ep{rnd}{slot}"
        if slot == 0:
            if rnd == 0:
                e(f"  s_cmp_ge_u32 s{S_W}, 4")
                e(f"  s_cbranch_scc1 {lab}")
                e(f"  s_mov_b32 s{S_T1}, s{S_W}")
            else:
                e(f"  s_cmp_lt_u32 s{S_W}, 4")
                e(f"  s_cbranch_scc1 {lab}")
                e(f"  s_sub_u32 s{S_T1}, s{S_W}, 4")
        else:
            e(f"  s_add_u32 s{S_T1}, s{S_W}, 4")
        e(f"  s_mul_hi_u32 s{S_T0}, s{S_T1}, 0x55555556")
        e(f"  s_mul_i32 s{S_T2}, s{S_T0}, 3")
        e(f"  s_sub_u32 s{S_T2}, s{S_T1}, s{S_T2}")
        e(f"  s_lshl_b32 s{S_T3}, s{S_T2}, 9")
        e(f"  v_add_u32 v46, s{S_T3}, v43")
        e("  ds_read_b128 v[0:3], v46") if False else None
        e("  ds_read_b128 v[48:51], v46")
        e("  ds_read_b128 v[52:55], v46 offset:16")
        e("  ds_read_b128 v[56:59], v46 offset:1536")
        e("  ds_read_b128 v[60:63], v46 offset:1552")
        e(f"  s_lshl_b32 s{S_T3}, s{S_T1}, 10")
        e(f"  v_add_u32 v46, s{S_T3}, v40")
        e("  v_add_u32 v47, 49152, v46")
        for w in range(8):
            e(f"  ds_read_b128 v[{64+w*4}:{67+w*4}], v{46 if w<4 else 47} offset:{(w%4)*12288}")
        e("  s_waitcnt lgkmcnt(8)")
        e("  v_max3_f32 v47, v48, v49, v50")
        e("  v_max3_f32 v47, v47, v51, v52")
        e("  v_max3_f32 v47, v47, v53, v54")
        e("  v_max_f32 v47, v47, v55")
        for k in range(8):
            e(f"  v_sub_f32 v{48+k}, v{48+k}, v47")
        for k in range(8):
            e(f"  v_exp_f32 v{48+k}, v{48+k}")
        e("  s_nop 0")
        e("  v_mul_f32 v47, v48, v56")
        for k in range(1, 8):
            e(f"  v_fmac_f32 v47, v{48+k}, v{56+k}")
        e("  v_rcp_f32 v47, v47")
        e("  s_waitcnt lgkmcnt(0)")
        for r in range(4):
            e(f"  v_mul_f32 v{64+r}, v{64+r}, v48")
        for w in range(1, 8):
            for r in range(4):
                e(f"  v_fmac_f32 v{64+r}, v{64+w*4+r}, v{48+w}")
        for r in range(4):
            e(f"  v_mul_f32 v{64+r}, v{64+r}, v47")
        e("  v_cvt_pk_bf16_f32 v64, v64, v65")
        e("  v_cvt_pk_bf16_f32 v65, v66, v67")
        e(f"  s_lshl_b32 s{S_T2}, s{S_T2}, 12")
        e(f"  s_lshl_b32 s{S_T0}, s{S_T0}, 5")
        e(f"  s_add_u32 s{S_T2}, s{S_T2}, s{S_T0}")
        e(f"  buffer_store_dwordx2 v[64:65], v42, s[{sO}:{sO+3}], s{S_T2} offen offset:{rnd*128}")
        e(f"{lab}:")
e("L_end:")
e("  s_endpgm")
e('.section .rodata,"a"')
e(".p2align 6")
e(".amdhsa_kernel standalone__gqa_softmax__near_ridge_kernel")
e("  .amdhsa_next_free_vgpr 256")
e("  .amdhsa_next_free_sgpr 48")
e("  .amdhsa_accum_offset 256")
e("  .amdhsa_group_segment_fixed_size 0")
e("  .amdhsa_kernarg_size 48")
e("  .amdhsa_user_sgpr_count 2")
e("  .amdhsa_user_sgpr_kernarg_segment_ptr 1")
e("  .amdhsa_system_sgpr_workgroup_id_x 1")
e(".end_amdhsa_kernel")
hdr = open("standalone__gqa_softmax__near_ridge.s.ref").read().split("; Override")[0]
open(sys.argv[1], "w").write(hdr + "\n".join(x for x in out if x is not None) + "\n")
```

```python
import sys, os, math, struct
FL = os.environ.get('FL', '')
NOEPI = os.environ.get('NOEPI'); NOLOOP = os.environ.get('NOLOOP')
out = []
def e(s=""): out.append(s)

O0, Q0, K0, S0, P0, F0 = 160, 112, 80, 56, 44, 32
NF = 3
V_E, V_O = 1, 2
KD = 3
KR = 7
VT = 11
V_MC = 19
V_L = 22
T = 25
def Ot(dt, t): return O0 + (dt*3+t)*4
def Qf(t, s): return Q0 + (t*4+s)*4
def Kf(kt, s): return K0 + (kt*4+s)*4
def St(kt, t): return S0 + (kt*3+t)*4
def Pf(t): return P0 + t*4
def r4(b): return f"v[{b}:{b+3}]"
def r2(b): return f"v[{b}:{b+1}]"
sQ, sK, sV, sO = 12, 16, 20, 24
S_W, S_H, S_C, S_LDS, S_IT, S_WOFF = 28, 29, 31, 32, 33, 30
S_T0, S_T1, S_T2, S_T3 = 34, 35, 36, 42
LDS_Q = 131072
LDS_ML = 131072 + 12288
C = (128 ** -0.5) * math.log2(math.e)
def fbits(f): return "0x%08x" % struct.unpack("<I", struct.pack("<f", f))[0]

e("; @launch grid=(256,1,1) block=(512,1,1) lds=147456")
e('.amdgcn_target "amdgcn-amd-amdhsa--gfx950"')
e(".text")
e(".globl standalone__gqa_softmax__near_ridge_kernel")
e(".p2align 8")
e(".type standalone__gqa_softmax__near_ridge_kernel,@function")
e("standalone__gqa_softmax__near_ridge_kernel:")
e("  s_cmp_ge_u32 s2, 256")
e("  s_cbranch_scc1 L_end")
e("  s_load_dwordx8 s[4:11], s[0:1], 0")
e("  v_and_b32 v40, 63, v0")
e("  v_lshrrev_b32 v41, 6, v0")
e("  s_nop 0")
e(f"  v_readfirstlane_b32 s{S_W}, v41")
e("  s_and_b32 s37, s2, 7")
e("  s_lshr_b32 s38, s2, 3")
e("  s_lshr_b32 s39, s38, 3")
e("  s_lshl_b32 s37, s37, 2")
e("  s_add_u32 s37, s37, s39")
e(f"  s_and_b32 s{S_H}, s38, 7")
e("  s_lshl_b32 s39, s37, 3")
e(f"  s_add_u32 s39, s39, s{S_H}")
e("  s_mul_i32 s40, s39, 12288")
e("  s_lshl_b32 s41, s37, 19")
e("  v_and_b32 v42, 15, v40")
e("  v_lshrrev_b32 v43, 4, v40")
e("  v_lshlrev_b32 v44, 1, v43")
e("  v_xor_b32 v45, v42, v44")
e("  v_lshlrev_b32 v46, 8, v43")
e(f"  v_lshl_add_u32 v{V_E}, v45, 4, v46")
e("  v_xor_b32 v45, 8, v45")
e(f"  v_lshl_add_u32 v{V_O}, v45, 4, v46")
for jj in range(4):
    e(f"  v_add_u32 v45, {4*jj}, v43")
    e("  v_xor_b32 v45, v42, v45")
    e(f"  v_lshl_add_u32 v{KD+jj}, v45, 4, v46")
e(f"  s_lshl_b32 s{S_LDS}, s{S_W}, 14")
e("  v_lshlrev_b32 v46, 8, v42")
e(f"  v_add_u32 v47, s{S_LDS}, v46")
for s in range(4):
    e(f"  v_add_u32 v45, {4*s}, v43")
    e("  v_xor_b32 v45, v42, v45")
    e(f"  v_lshl_add_u32 v{KR+s}, v45, 4, v47")
e("  v_lshrrev_b32 v44, 2, v42")
e("  v_and_b32 v45, 3, v42")
e("  v_lshl_add_u32 v46, v43, 2, v44")
e("  v_and_b32 v47, 7, v46")
e("  v_lshlrev_b32 v48, 8, v46")
e("  v_lshrrev_b32 v49, 1, v45")
e("  v_lshl_add_u32 v48, v49, 4, v48")
e("  v_and_b32 v49, 1, v45")
e("  v_lshl_add_u32 v48, v49, 3, v48")
e(f"  s_add_u32 s{S_T0}, s{S_LDS}, 8192")
e(f"  v_add_u32 v48, s{S_T0}, v48")
for dt in range(8):
    e(f"  v_xor_b32 v49, {dt}, v47")
    e(f"  v_lshl_add_u32 v{VT+dt}, v49, 5, v48")
e("  s_waitcnt lgkmcnt(0)")
e(f"  s_add_u32 s{sQ}, s4, s40"); e(f"  s_addc_u32 s{sQ+1}, s5, 0"); e(f"  s_mov_b32 s{sQ+2}, 12288"); e(f"  s_mov_b32 s{sQ+3}, 0x00020000")
e(f"  s_add_u32 s{sK}, s6, s41"); e(f"  s_addc_u32 s{sK+1}, s7, 0"); e(f"  s_mov_b32 s{sK+2}, 524288"); e(f"  s_mov_b32 s{sK+3}, 0x00020000")
e(f"  s_add_u32 s{sV}, s8, s41"); e(f"  s_addc_u32 s{sV+1}, s9, 0"); e(f"  s_mov_b32 s{sV+2}, 524288"); e(f"  s_mov_b32 s{sV+3}, 0x00020000")
e(f"  s_add_u32 s{sO}, s10, s40"); e(f"  s_addc_u32 s{sO+1}, s11, 0"); e(f"  s_mov_b32 s{sO+2}, 12288"); e(f"  s_mov_b32 s{sO+3}, 0x00020000")
e(f"  s_lshl_b32 s{S_WOFF}, s{S_W}, 16")
ROT = int(os.environ.get('ROT', '8'))
if ROT == 1: e(f"  s_mov_b32 s{S_H}, 0")
elif ROT == 2: e(f"  s_and_b32 s{S_H}, s{S_H}, 1"); e(f"  s_lshl_b32 s{S_H}, s{S_H}, 2")
elif ROT == 4: e(f"  s_and_b32 s{S_H}, s{S_H}, 3"); e(f"  s_lshl_b32 s{S_H}, s{S_H}, 1")
e(f"  s_mov_b32 s{S_C}, {fbits(C)}")

def tile_soff(delta):
    e(f"  s_add_u32 s{S_T3}, s{S_IT}, s{S_H}")
    if delta: e(f"  s_add_u32 s{S_T3}, s{S_T3}, {delta}")
    e(f"  s_and_b32 s{S_T3}, s{S_T3}, 7")
    e(f"  s_lshl_b32 s{S_T3}, s{S_T3}, 13")
    e(f"  s_add_u32 s{S_T3}, s{S_T3}, s{S_WOFF}")

def dma_tile(srd, ldsoff, vregs):
    e(f"  s_add_u32 s{S_T1}, s{S_LDS}, {ldsoff}")
    e(f"  s_mov_b32 m0, s{S_T1}")
    e(f"  s_add_u32 s{S_T0}, s{S_T3}, 4096")
    for j in range(4):
        e(f"  buffer_load_dwordx4 v{vregs[j % len(vregs)]}, s[{srd}:{srd+3}], s{S_T3} offen offset:{j*1024} {FL} lds")
    e(f"  s_add_u32 s{S_T1}, s{S_T1}, 4096")
    e(f"  s_mov_b32 m0, s{S_T1}")
    e("  s_nop 0")
    for j in range(4):
        e(f"  buffer_load_dwordx4 v{vregs[j % len(vregs)]}, s[{srd}:{srd+3}], s{S_T0} offen offset:{j*1024} {FL} lds")
def load_K(delta):
    tile_soff(delta); dma_tile(sK, 0, [KD, KD+1, KD+2, KD+3])
def load_V(delta):
    tile_soff(delta); dma_tile(sV, 8192, [V_E, V_O])

e(f"  s_mov_b32 s{S_IT}, 0")
load_K(0)
load_V(0)
e(f"  s_cmp_ge_u32 s{S_W}, 3")
e("  s_cbranch_scc1 L_noq")
e(f"  s_lshl_b32 s{S_T0}, s{S_W}, 12")
e(f"  s_add_u32 s{S_T1}, s{S_T0}, {LDS_Q}")
e(f"  s_mov_b32 m0, s{S_T1}")
e("  s_nop 0")
for j in range(4):
    e(f"  buffer_load_dwordx4 v{KD+j}, s[{sQ}:{sQ+3}], s{S_T0} offen offset:{j*1024} lds")
e("L_noq:")
for i in range(96):
    e(f"  v_mov_b32 v{O0+i}, 0")
for t in range(3):
    e(f"  v_mov_b32 v{V_MC+t}, 0xff800000")
    e(f"  v_mov_b32 v{V_L+t}, 0")
e(f"  s_sub_u32 s{S_T0}, {LDS_Q}, s{S_LDS}")
for s in range(4):
    e(f"  v_add_u32 v{40+s}, s{S_T0}, v{KR+s}")
e("  s_waitcnt vmcnt(0)")
e("  s_barrier")
for t in range(3):
    for s in range(4):
        e(f"  ds_read_b128 {r4(Qf(t,s))}, v{40+s} offset:{t*4096}")
e("  s_waitcnt lgkmcnt(0)")
if NOLOOP: e("  s_branch L_epi")


X = F0
TM = 25
def qk(t):
    L = []
    for s in range(4):
        for kt in range(2):
            c = "0" if s == 0 else r4(St(kt,t))
            L.append(f"  v_mfma_f32_16x16x32_bf16 {r4(St(kt,t))}, {r4(Kf(kt,s))}, {r4(Qf(t,s))}, {c}")
    return L
def pv(t, waits=False):
    L = []
    for dt in range(8):
        if waits: L.append(f"  s_waitcnt lgkmcnt({(7-dt)*2})")
        L.append(f"  v_mfma_f32_16x16x32_bf16 {r4(Ot(dt,t))}, {r4(K0+dt*4)}, {r4(Pf(t))}, {r4(Ot(dt,t))}")
    return L
def sm1(t):
    L = []
    for kt in range(2):
        for r in range(4):
            L.append(f"  v_fma_f32 v{X+kt*4+r}, v{St(kt,t)+r}, s{S_C}, -v{V_MC+t}")
    L.append(f"  v_max3_f32 v{TM}, v{X}, v{X+1}, v{X+2}")
    L.append(f"  v_max3_f32 v{TM+1}, v{X+3}, v{X+4}, v{X+5}")
    L.append(f"  v_max3_f32 v{TM}, v{TM}, v{X+6}, v{X+7}")
    L.append(f"  v_max_f32 v{TM}, v{TM}, v{TM+1}")
    L.append(f"  v_cmp_lt_f32 vcc, 0x41000000, v{TM}")
    return L
def sm2(t):
    L = []
    for k in range(8):
        L.append(f"  v_exp_f32 v{X+k}, v{X+k}")
    L.append(f"  v_add_f32 v{TM}, v{X}, v{X+1}")
    L.append(f"  v_add_f32 v{TM+1}, v{X+2}, v{X+3}")
    L.append(f"  v_add_f32 v{TM+2}, v{X+4}, v{X+5}")
    L.append(f"  v_add_f32 v{TM+3}, v{X+6}, v{X+7}")
    L.append(f"  v_cvt_pk_bf16_f32 v{Pf(t)}, v{X}, v{X+1}")
    L.append(f"  v_cvt_pk_bf16_f32 v{Pf(t)+1}, v{X+2}, v{X+3}")
    L.append(f"  v_add_f32 v{TM}, v{TM}, v{TM+1}")
    L.append(f"  v_add_f32 v{TM+2}, v{TM+2}, v{TM+3}")
    L.append(f"  v_cvt_pk_bf16_f32 v{Pf(t)+2}, v{X+4}, v{X+5}")
    L.append(f"  v_cvt_pk_bf16_f32 v{Pf(t)+3}, v{X+6}, v{X+7}")
    L.append(f"  v_add_f32 v{TM}, v{TM}, v{TM+2}")
    L.append(f"  v_add_f32 v{V_L+t}, v{V_L+t}, v{TM}")
    return L
def slow(t, tag):
    L = [f"L_slow{tag}:"]
    a = TM+1; b = TM
    L.append(f"  v_max3_f32 v{a}, v{St(0,t)}, v{St(0,t)+1}, v{St(0,t)+2}")
    L.append(f"  v_max3_f32 v{a}, v{a}, v{St(0,t)+3}, v{St(1,t)}")
    L.append(f"  v_max3_f32 v{a}, v{a}, v{St(1,t)+1}, v{St(1,t)+2}")
    L.append(f"  v_max_f32 v{a}, v{a}, v{St(1,t)+3}")
    L.append(f"  v_mov_b32 v{b}, v{a}")
    L.append("  s_nop 1")
    L.append(f"  v_permlane32_swap_b32 v{a}, v{b}")
    L.append(f"  v_max_f32 v{a}, v{a}, v{b}")
    L.append(f"  v_mov_b32 v{b}, v{a}")
    L.append("  s_nop 1")
    L.append(f"  v_permlane16_swap_b32 v{a}, v{b}")
    L.append(f"  v_max_f32 v{a}, v{a}, v{b}")
    L.append(f"  v_mul_f32 v{a}, s{S_C}, v{a}")
    L.append(f"  v_max_f32 v{a}, v{a}, v{V_MC+t}")
    L.append(f"  v_sub_f32 v{b}, v{V_MC+t}, v{a}")
    L.append(f"  v_exp_f32 v{b}, v{b}")
    L.append(f"  v_mov_b32 v{V_MC+t}, v{a}")
    L.append(f"  v_mul_f32 v{V_L+t}, v{V_L+t}, v{b}")
    for dt in range(8):
        for r in range(4):
            L.append(f"  v_mul_f32 v{Ot(dt,t)+r}, v{Ot(dt,t)+r}, v{b}")
    for kt in range(2):
        for r in range(4):
            L.append(f"  v_fma_f32 v{X+kt*4+r}, v{St(kt,t)+r}, s{S_C}, -v{V_MC+t}")
    L.append(f"  s_branch L_back{tag}")
    return L
def merge(m, v, lead=0):
    res = list(m[:lead]); m = m[lead:]
    if lead: res.append("  s_nop 3")
    n = len(m)
    if n == 0: return res + v
    per = len(v) / n
    vi = 0
    for i, x in enumerate(m):
        res.append(x)
        tgt = int(round(per * (i+1)))
        while vi < tgt: res.append(v[vi]); vi += 1
    res += v[vi:]
    return res
slow_blocks = []
def sm_phase(m, t, tag, lead):
    k = len(m)//3
    for x in merge(m[:k+lead], sm1(t), lead): e(x)
    e(f"  s_cbranch_vccnz L_slow{tag}")
    e(f"L_back{tag}:")
    for x in merge(m[k+lead:], sm2(t), 0): e(x)
    slow_blocks.extend(slow(t, tag))

STAMP = os.environ.get('STAMP')
def stamp(k):
    if not STAMP: return
    e("  s_memtime s[44:45]")
    e(f"  s_lshl_b32 s46, s{S_IT}, 3")
    e(f"  s_add_u32 s46, s46, {k}")
    e("  s_waitcnt lgkmcnt(0)")
    e("  s_mov_b32 s47, m0")
    e("  s_mov_b32 m0, s46")
    e("  s_nop 0")
    e("  v_writelane_b32 v43, s44, m0")
    e("  s_mov_b32 m0, s47")
e("L_loop:")
stamp(0)
e("  s_waitcnt vmcnt(8)")
stamp(1)
for kt in range(2):
    for s in range(4):
        e(f"  ds_read_b128 {r4(Kf(kt,s))}, v{KR+s} offset:{kt*4096}")
e("  s_waitcnt lgkmcnt(0)")
e(f"  s_cmp_ge_u32 s{S_IT}, 7")
e("  s_cbranch_scc1 L_skipK")
load_K(1)
e("L_skipK:")
stamp(2)
for x in qk(0): e(x)
e("  s_nop 3")
sm_phase(qk(1), 0, "a", 3)
sm_phase(qk(2), 1, "b", 4)
stamp(3)
e(f"  s_cmp_lt_u32 s{S_IT}, 7")
e("  s_cbranch_scc1 L_w8")
e("  s_waitcnt vmcnt(0)")
e("L_w8:")
e("  s_waitcnt vmcnt(8)")
stamp(4)
for dt in range(8):
    for kh in range(2):
        e(f"  ds_read_b64_tr_b16 {r2(K0+dt*4+kh*2)}, v{VT+dt} offset:{kh*4096}")
e("  s_nop 3")
sm_phase(pv(0, True), 2, "c", 0)
for x in pv(1): e(x)
for x in pv(2): e(x)
stamp(5)
e(f"  s_cmp_ge_u32 s{S_IT}, 7")
e("  s_cbranch_scc1 L_skipV")
load_V(1)
e("L_skipV:")
e(f"  s_add_u32 s{S_IT}, s{S_IT}, 1")
e(f"  s_cmp_lt_u32 s{S_IT}, 8")
e("  s_cbranch_scc1 L_loop")
e("  s_branch L_epi")
for x in slow_blocks: e(x)

e("L_epi:")
if STAMP:
    e("  s_cmp_lg_u32 s2, 8")
    e("  s_cbranch_scc1 L_nost")
    e(f"  s_cmp_lg_u32 s{S_W}, 1")
    e("  s_cbranch_scc1 L_nost")
    e("  s_load_dwordx2 s[44:45], s[0:1], 32")
    e("  s_waitcnt lgkmcnt(0)")
    e("  s_mov_b32 s46, 256"); e("  s_mov_b32 s47, 0x00020000")
    e("  v_and_b32 v42, 63, v0"); e("  v_lshlrev_b32 v42, 2, v42")
    e("  buffer_store_dword v43, v42, s[44:47], 0 offen")
    e("L_nost:")
if NOEPI: e("  s_endpgm")
for t in range(3):
    a = V_L + t
    e(f"  v_mov_b32 v{T}, v{a}")
    e("  s_nop 1")
    e(f"  v_permlane32_swap_b32 v{a}, v{T}")
    e(f"  v_add_f32 v{a}, v{a}, v{T}")
    e(f"  v_mov_b32 v{T}, v{a}")
    e("  s_nop 1")
    e(f"  v_permlane16_swap_b32 v{a}, v{T}")
    e(f"  v_add_f32 v{a}, v{a}, v{T}")
e("  v_and_b32 v42, 15, v0")
e("  v_lshlrev_b32 v43, 5, v42")
e(f"  s_lshl_b32 s{S_T0}, s{S_W}, 2")
e(f"  s_add_u32 s{S_T0}, s{S_T0}, {LDS_ML}")
e(f"  v_add_u32 v44, s{S_T0}, v43")
for t in range(3):
    e(f"  ds_write_b32 v44, v{V_MC+t} offset:{t*512}")
    e(f"  ds_write_b32 v44, v{V_L+t} offset:{1536+t*512}")
e(f"  v_add_u32 v43, {LDS_ML}, v43")
e("  v_and_b32 v40, 63, v0")
e("  v_lshlrev_b32 v40, 4, v40")
e(f"  s_mul_i32 s{S_T0}, s{S_W}, 12288")
e(f"  v_add_u32 v41, s{S_T0}, v40")
e("  v_bfe_u32 v45, v0, 4, 2")
e("  v_lshlrev_b32 v42, 8, v42")
e("  v_lshl_add_u32 v42, v45, 3, v42")
e("  s_waitcnt lgkmcnt(0)")
for rnd in range(2):
    e("  s_barrier")
    for k in range(12):
        dt = rnd*4 + k//3; t = k % 3
        e(f"  ds_write_b128 v41, {r4(Ot(dt,t))} offset:{k*1024}")
    e("  s_waitcnt lgkmcnt(0)")
    e("  s_barrier")
    for slot in range(2):
        lab = f"L_ep{rnd}{slot}"
        if slot == 0:
            if rnd == 0:
                e(f"  s_cmp_ge_u32 s{S_W}, 4")
                e(f"  s_cbranch_scc1 {lab}")
                e(f"  s_mov_b32 s{S_T1}, s{S_W}")
            else:
                e(f"  s_cmp_lt_u32 s{S_W}, 4")
                e(f"  s_cbranch_scc1 {lab}")
                e(f"  s_sub_u32 s{S_T1}, s{S_W}, 4")
        else:
            e(f"  s_add_u32 s{S_T1}, s{S_W}, 4")
        e(f"  s_mul_hi_u32 s{S_T0}, s{S_T1}, 0x55555556")
        e(f"  s_mul_i32 s{S_T2}, s{S_T0}, 3")
        e(f"  s_sub_u32 s{S_T2}, s{S_T1}, s{S_T2}")
        e(f"  s_lshl_b32 s{S_T3}, s{S_T2}, 9")
        e(f"  v_add_u32 v46, s{S_T3}, v43")
        e("  ds_read_b128 v[0:3], v46") if False else None
        e("  ds_read_b128 v[48:51], v46")
        e("  ds_read_b128 v[52:55], v46 offset:16")
        e("  ds_read_b128 v[56:59], v46 offset:1536")
        e("  ds_read_b128 v[60:63], v46 offset:1552")
        e(f"  s_lshl_b32 s{S_T3}, s{S_T1}, 10")
        e(f"  v_add_u32 v46, s{S_T3}, v40")
        e("  v_add_u32 v47, 49152, v46")
        for w in range(8):
            e(f"  ds_read_b128 v[{64+w*4}:{67+w*4}], v{46 if w<4 else 47} offset:{(w%4)*12288}")
        e("  s_waitcnt lgkmcnt(8)")
        e("  v_max3_f32 v47, v48, v49, v50")
        e("  v_max3_f32 v47, v47, v51, v52")
        e("  v_max3_f32 v47, v47, v53, v54")
        e("  v_max_f32 v47, v47, v55")
        for k in range(8):
            e(f"  v_sub_f32 v{48+k}, v{48+k}, v47")
        for k in range(8):
            e(f"  v_exp_f32 v{48+k}, v{48+k}")
        e("  s_nop 0")
        e("  v_mul_f32 v47, v48, v56")
        for k in range(1, 8):
            e(f"  v_fmac_f32 v47, v{48+k}, v{56+k}")
        e("  v_rcp_f32 v47, v47")
        e("  s_waitcnt lgkmcnt(0)")
        for r in range(4):
            e(f"  v_mul_f32 v{64+r}, v{64+r}, v48")
        for w in range(1, 8):
            for r in range(4):
                e(f"  v_fmac_f32 v{64+r}, v{64+w*4+r}, v{48+w}")
        for r in range(4):
            e(f"  v_mul_f32 v{64+r}, v{64+r}, v47")
        e("  v_cvt_pk_bf16_f32 v64, v64, v65")
        e("  v_cvt_pk_bf16_f32 v65, v66, v67")
        e(f"  s_lshl_b32 s{S_T2}, s{S_T2}, 12")
        e(f"  s_lshl_b32 s{S_T0}, s{S_T0}, 5")
        e(f"  s_add_u32 s{S_T2}, s{S_T2}, s{S_T0}")
        e(f"  buffer_store_dwordx2 v[64:65], v42, s[{sO}:{sO+3}], s{S_T2} offen offset:{rnd*128}")
        e(f"{lab}:")
e("L_end:")
e("  s_endpgm")
e('.section .rodata,"a"')
e(".p2align 6")
e(".amdhsa_kernel standalone__gqa_softmax__near_ridge_kernel")
e("  .amdhsa_next_free_vgpr 256")
e("  .amdhsa_next_free_sgpr 48")
e("  .amdhsa_accum_offset 256")
e("  .amdhsa_group_segment_fixed_size 0")
e("  .amdhsa_kernarg_size 48")
e("  .amdhsa_user_sgpr_count 2")
e("  .amdhsa_user_sgpr_kernarg_segment_ptr 1")
e("  .amdhsa_system_sgpr_workgroup_id_x 1")
e(".end_amdhsa_kernel")
hdr = open("standalone__gqa_softmax__near_ridge.s.ref").read().split("; Override")[0]
open(sys.argv[1], "w").write(hdr + "\n".join(x for x in out if x is not None) + "\n")
```

```python
import sys, os, math, struct
FL = os.environ.get('FL', '')
NOEPI = os.environ.get('NOEPI'); NOLOOP = os.environ.get('NOLOOP')
out = []
def e(s=""): out.append(s)

O0, Q0, K0, S0, P0, F0 = 160, 112, 80, 56, 44, 32
NF = 3
V_E, V_O = 1, 2
KD = 3
KR = 7
VT = 11
V_MC = 19
V_L = 22
T = 25
def Ot(dt, t): return O0 + (dt*3+t)*4
def Qf(t, s): return Q0 + (t*4+s)*4
def Kf(kt, s): return K0 + (kt*4+s)*4
def St(kt, t): return S0 + (kt*3+t)*4
def Pf(t): return P0 + t*4
def r4(b): return f"v[{b}:{b+3}]"
def r2(b): return f"v[{b}:{b+1}]"
sQ, sK, sV, sO = 12, 16, 20, 24
S_W, S_H, S_C, S_LDS, S_IT, S_WOFF = 28, 29, 31, 32, 33, 30
S_T0, S_T1, S_T2, S_T3 = 34, 35, 36, 42
LDS_Q = 131072
LDS_ML = 131072 + 12288
C = (128 ** -0.5) * math.log2(math.e)
def fbits(f): return "0x%08x" % struct.unpack("<I", struct.pack("<f", f))[0]

e("; @launch grid=(256,1,1) block=(512,1,1) lds=147456")
e('.amdgcn_target "amdgcn-amd-amdhsa--gfx950"')
e(".text")
e(".globl standalone__gqa_softmax__near_ridge_kernel")
e(".p2align 8")
e(".type standalone__gqa_softmax__near_ridge_kernel,@function")
e("standalone__gqa_softmax__near_ridge_kernel:")
e("  s_cmp_ge_u32 s2, 256")
e("  s_cbranch_scc1 L_end")
e("  s_load_dwordx8 s[4:11], s[0:1], 0")
def stampi(idx):
    if not os.environ.get('STAMP'): return
    e("  s_memtime s[44:45]")
    e("  s_waitcnt lgkmcnt(0)")
    e(f"  v_writelane_b32 v31, s44, {idx}")
stampi(6)
if os.environ.get('CPF', '1') == '1':
    e("  s_getpc_b64 s[44:45]")
    e("L_pc0:")
    e("  v_and_b32 v40, 63, v0")
    e("  v_lshlrev_b32 v40, 7, v40")
    e("  v_min_u32 v40, L_end-L_pc0, v40")
    e("  v_mov_b32 v41, s45")
    e("  v_add_co_u32 v40, vcc, s44, v40")
    e("  v_addc_co_u32 v41, vcc, 0, v41, vcc")
    e("  global_load_dword v33, v[40:41], off")
e("  v_and_b32 v40, 63, v0")
e("  v_lshrrev_b32 v41, 6, v0")
e("  s_nop 0")
e(f"  v_readfirstlane_b32 s{S_W}, v41")
e("  s_and_b32 s37, s2, 7")
e("  s_lshr_b32 s38, s2, 3")
e("  s_lshr_b32 s39, s38, 3")
e("  s_lshl_b32 s37, s37, 2")
e("  s_add_u32 s37, s37, s39")
e(f"  s_and_b32 s{S_H}, s38, 7")
e("  s_lshl_b32 s39, s37, 3")
e(f"  s_add_u32 s39, s39, s{S_H}")
e("  s_mul_i32 s40, s39, 12288")
e("  s_lshl_b32 s41, s37, 19")
e("  v_and_b32 v42, 15, v40")
e("  v_lshrrev_b32 v43, 4, v40")
e("  v_lshlrev_b32 v44, 1, v43")
e("  v_xor_b32 v45, v42, v44")
e("  v_lshlrev_b32 v46, 8, v43")
e(f"  v_lshl_add_u32 v{V_E}, v45, 4, v46")
e("  v_xor_b32 v45, 8, v45")
e(f"  v_lshl_add_u32 v{V_O}, v45, 4, v46")
for jj in range(4):
    e(f"  v_add_u32 v45, {4*jj}, v43")
    e("  v_xor_b32 v45, v42, v45")
    e(f"  v_lshl_add_u32 v{KD+jj}, v45, 4, v46")
e(f"  s_lshl_b32 s{S_LDS}, s{S_W}, 14")
e("  v_lshlrev_b32 v46, 8, v42")
e(f"  v_add_u32 v47, s{S_LDS}, v46")
for s in range(4):
    e(f"  v_add_u32 v45, {4*s}, v43")
    e("  v_xor_b32 v45, v42, v45")
    e(f"  v_lshl_add_u32 v{KR+s}, v45, 4, v47")
e("  v_lshrrev_b32 v44, 2, v42")
e("  v_and_b32 v45, 3, v42")
e("  v_lshl_add_u32 v46, v43, 2, v44")
e("  v_and_b32 v47, 7, v46")
e("  v_lshlrev_b32 v48, 8, v46")
e("  v_lshrrev_b32 v49, 1, v45")
e("  v_lshl_add_u32 v48, v49, 4, v48")
e("  v_and_b32 v49, 1, v45")
e("  v_lshl_add_u32 v48, v49, 3, v48")
e(f"  s_add_u32 s{S_T0}, s{S_LDS}, 8192")
e(f"  v_add_u32 v48, s{S_T0}, v48")
for dt in range(8):
    e(f"  v_xor_b32 v49, {dt}, v47")
    e(f"  v_lshl_add_u32 v{VT+dt}, v49, 5, v48")
e("  s_waitcnt lgkmcnt(0)")
stampi(22)
e(f"  s_add_u32 s{sQ}, s4, s40"); e(f"  s_addc_u32 s{sQ+1}, s5, 0"); e(f"  s_mov_b32 s{sQ+2}, 12288"); e(f"  s_mov_b32 s{sQ+3}, 0x00020000")
e(f"  s_add_u32 s{sK}, s6, s41"); e(f"  s_addc_u32 s{sK+1}, s7, 0"); e(f"  s_mov_b32 s{sK+2}, 524288"); e(f"  s_mov_b32 s{sK+3}, 0x00020000")
e(f"  s_add_u32 s{sV}, s8, s41"); e(f"  s_addc_u32 s{sV+1}, s9, 0"); e(f"  s_mov_b32 s{sV+2}, 524288"); e(f"  s_mov_b32 s{sV+3}, 0x00020000")
e(f"  s_add_u32 s{sO}, s10, s40"); e(f"  s_addc_u32 s{sO+1}, s11, 0"); e(f"  s_mov_b32 s{sO+2}, 12288"); e(f"  s_mov_b32 s{sO+3}, 0x00020000")
e(f"  s_lshl_b32 s{S_WOFF}, s{S_W}, 16")
ROT = int(os.environ.get('ROT', '8'))
if ROT == 1: e(f"  s_mov_b32 s{S_H}, 0")
elif ROT == 2: e(f"  s_and_b32 s{S_H}, s{S_H}, 1"); e(f"  s_lshl_b32 s{S_H}, s{S_H}, 2")
elif ROT == 4: e(f"  s_and_b32 s{S_H}, s{S_H}, 3"); e(f"  s_lshl_b32 s{S_H}, s{S_H}, 1")
e(f"  s_mov_b32 s{S_C}, {fbits(C)}")

def tile_soff(delta):
    e(f"  s_add_u32 s{S_T3}, s{S_IT}, s{S_H}")
    if delta: e(f"  s_add_u32 s{S_T3}, s{S_T3}, {delta}")
    e(f"  s_and_b32 s{S_T3}, s{S_T3}, 7")
    e(f"  s_lshl_b32 s{S_T3}, s{S_T3}, 13")
    e(f"  s_add_u32 s{S_T3}, s{S_T3}, s{S_WOFF}")

def dma_tile(srd, ldsoff, vregs):
    e(f"  s_add_u32 s{S_T1}, s{S_LDS}, {ldsoff}")
    e(f"  s_mov_b32 m0, s{S_T1}")
    e(f"  s_add_u32 s{S_T0}, s{S_T3}, 4096")
    for j in range(4):
        e(f"  buffer_load_dwordx4 v{vregs[j % len(vregs)]}, s[{srd}:{srd+3}], s{S_T3} offen offset:{j*1024} {FL} lds")
    e(f"  s_add_u32 s{S_T1}, s{S_T1}, 4096")
    e(f"  s_mov_b32 m0, s{S_T1}")
    e("  s_nop 0")
    for j in range(4):
        e(f"  buffer_load_dwordx4 v{vregs[j % len(vregs)]}, s[{srd}:{srd+3}], s{S_T0} offen offset:{j*1024} {FL} lds")
def load_K(delta):
    tile_soff(delta); dma_tile(sK, 0, [KD, KD+1, KD+2, KD+3])
def load_V(delta):
    tile_soff(delta); dma_tile(sV, 8192, [V_E, V_O])

def dma_list(delta, srd, ldsoff, vregs):
    L = []
    L.append(f"  s_add_u32 s{S_T3}, s{S_IT}, s{S_H}")
    L.append(f"  s_add_u32 s{S_T3}, s{S_T3}, {delta}")
    L.append(f"  s_and_b32 s{S_T3}, s{S_T3}, 7")
    L.append(f"  s_lshl_b32 s{S_T3}, s{S_T3}, 13")
    L.append(f"  s_add_u32 s{S_T3}, s{S_T3}, s{S_WOFF}")
    L.append(f"  s_cmp_lt_u32 s{S_IT}, 7")
    L.append(f"  s_cselect_b32 s{srd+2}, 524288, 0")
    L.append(f"  s_add_u32 s{S_T1}, s{S_LDS}, {ldsoff}")
    L.append(f"  s_mov_b32 m0, s{S_T1}")
    L.append(f"  s_add_u32 s{S_T0}, s{S_T3}, 4096")
    pre = list(L); D = []
    for j in range(4):
        D.append([f"  buffer_load_dwordx4 v{vregs[j % len(vregs)]}, s[{srd}:{srd+3}], s{S_T3} offen offset:{j*1024} {FL} lds"])
    for j in range(4):
        x = []
        if j == 0:
            x += [f"  s_add_u32 s{S_T1}, s{S_T1}, 4096", f"  s_mov_b32 m0, s{S_T1}", "  s_nop 0"]
        x.append(f"  buffer_load_dwordx4 v{vregs[j % len(vregs)]}, s[{srd}:{srd+3}], s{S_T0} offen offset:{j*1024} {FL} lds")
        D.append(x)
    if os.environ.get('NODMA'): D = []
    return pre, D
def merge_dma(m, pre, D):
    res = list(pre)
    n = len(m)
    if os.environ.get('NOMFMA'): m = [x for x in m if 'mfma' not in x] + ["  s_nop 0"]*8
    for i, x in enumerate(m):
        res.append(x)
        k0 = i * len(D) // n; k1 = (i+1) * len(D) // n
        for k in range(k0, k1): res += D[k]
    return res
e(f"  s_mov_b32 s{S_IT}, 0")
e(f"  v_mov_b32 v40, 0")
e(f"  buffer_load_dword v34, v40, s[{sO}:{sO+3}], 0 offen")
e(f"  s_cmp_ge_u32 s{S_W}, 4")
e("  s_cbranch_scc1 L_pB")
load_K(0)
load_V(0)
e("  s_branch L_noq")
e("L_pB:")
e(f"  s_cmp_lt_u32 s{S_W}, 5")
e("  s_cbranch_scc1 L_pB2")
e(f"  s_sub_u32 s{S_T2}, s{S_W}, 5")
e(f"  s_lshl_b32 s{S_T0}, s{S_T2}, 12")
e(f"  s_add_u32 s{S_T1}, s{S_T0}, {LDS_Q}")
e(f"  s_mov_b32 m0, s{S_T1}")
e("  s_nop 0")
for j in range(4):
    e(f"  buffer_load_dwordx4 v{KD+j}, s[{sQ}:{sQ+3}], s{S_T0} offen offset:{j*1024} lds")
e("L_pB2:")
load_V(0)
load_K(0)
e("L_noq:")
stampi(23)
for i in range(96):
    e(f"  v_mov_b32 v{O0+i}, 0")
for t in range(3):
    e(f"  v_mov_b32 v{V_MC+t}, 0xff800000")
    e(f"  v_mov_b32 v{V_L+t}, 0")
e(f"  s_sub_u32 s{S_T0}, {LDS_Q}, s{S_LDS}")
for s in range(4):
    e(f"  v_add_u32 v{40+s}, s{S_T0}, v{KR+s}")
stampi(30)
e("  s_waitcnt vmcnt(0)")
stampi(31)
e("  s_barrier")
stampi(38)
for t in range(3):
    for s in range(4):
        e(f"  ds_read_b128 {r4(Qf(t,s))}, v{40+s} offset:{t*4096}")
e("  s_waitcnt lgkmcnt(0)")
stampi(7)
if os.environ.get('PRIO'):
    e(f"  s_cmp_lt_u32 s{S_W}, 4")
    e("  s_cbranch_scc1 L_noprio")
    e("  s_setprio 1")
    e("L_noprio:")
if NOLOOP: e("  s_branch L_epi")


X = F0
TM = 25
def qk(t):
    L = []
    for s in range(4):
        for kt in range(2):
            c = "0" if s == 0 else r4(St(kt,t))
            L.append(f"  v_mfma_f32_16x16x32_bf16 {r4(St(kt,t))}, {r4(Kf(kt,s))}, {r4(Qf(t,s))}, {c}")
    return L
def pv(t, waits=False):
    L = []
    for dt in range(8):
        if waits: L.append(f"  s_waitcnt lgkmcnt({(7-dt)*2})")
        L.append(f"  v_mfma_f32_16x16x32_bf16 {r4(Ot(dt,t))}, {r4(K0+dt*4)}, {r4(Pf(t))}, {r4(Ot(dt,t))}")
    return L
def sm1(t):
    L = []
    for kt in range(2):
        for r in range(4):
            L.append(f"  v_fma_f32 v{X+kt*4+r}, v{St(kt,t)+r}, s{S_C}, -v{V_MC+t}")
    L.append(f"  v_max3_f32 v{TM}, v{X}, v{X+1}, v{X+2}")
    L.append(f"  v_max3_f32 v{TM+1}, v{X+3}, v{X+4}, v{X+5}")
    L.append(f"  v_max3_f32 v{TM}, v{TM}, v{X+6}, v{X+7}")
    L.append(f"  v_max_f32 v{TM}, v{TM}, v{TM+1}")
    L.append(f"  v_cmp_lt_f32 vcc, 0x41000000, v{TM}")
    return L
def sm2(t):
    L = []
    for k in range(8):
        L.append(f"  v_exp_f32 v{X+k}, v{X+k}")
    L.append(f"  v_add_f32 v{TM}, v{X}, v{X+1}")
    L.append(f"  v_add_f32 v{TM+1}, v{X+2}, v{X+3}")
    L.append(f"  v_add_f32 v{TM+2}, v{X+4}, v{X+5}")
    L.append(f"  v_add_f32 v{TM+3}, v{X+6}, v{X+7}")
    L.append(f"  v_cvt_pk_bf16_f32 v{Pf(t)}, v{X}, v{X+1}")
    L.append(f"  v_cvt_pk_bf16_f32 v{Pf(t)+1}, v{X+2}, v{X+3}")
    L.append(f"  v_add_f32 v{TM}, v{TM}, v{TM+1}")
    L.append(f"  v_add_f32 v{TM+2}, v{TM+2}, v{TM+3}")
    L.append(f"  v_cvt_pk_bf16_f32 v{Pf(t)+2}, v{X+4}, v{X+5}")
    L.append(f"  v_cvt_pk_bf16_f32 v{Pf(t)+3}, v{X+6}, v{X+7}")
    L.append(f"  v_add_f32 v{TM}, v{TM}, v{TM+2}")
    L.append(f"  v_add_f32 v{V_L+t}, v{V_L+t}, v{TM}")
    return L
def slow(t, tag):
    L = [f"L_slow{tag}:"]
    a = TM+1; b = TM
    L.append(f"  v_max3_f32 v{a}, v{St(0,t)}, v{St(0,t)+1}, v{St(0,t)+2}")
    L.append(f"  v_max3_f32 v{a}, v{a}, v{St(0,t)+3}, v{St(1,t)}")
    L.append(f"  v_max3_f32 v{a}, v{a}, v{St(1,t)+1}, v{St(1,t)+2}")
    L.append(f"  v_max_f32 v{a}, v{a}, v{St(1,t)+3}")
    L.append(f"  v_mov_b32 v{b}, v{a}")
    L.append("  s_nop 1")
    L.append(f"  v_permlane32_swap_b32 v{a}, v{b}")
    L.append(f"  v_max_f32 v{a}, v{a}, v{b}")
    L.append(f"  v_mov_b32 v{b}, v{a}")
    L.append("  s_nop 1")
    L.append(f"  v_permlane16_swap_b32 v{a}, v{b}")
    L.append(f"  v_max_f32 v{a}, v{a}, v{b}")
    L.append(f"  v_mul_f32 v{a}, s{S_C}, v{a}")
    L.append(f"  v_max_f32 v{a}, v{a}, v{V_MC+t}")
    L.append(f"  v_sub_f32 v{b}, v{V_MC+t}, v{a}")
    L.append(f"  v_exp_f32 v{b}, v{b}")
    L.append(f"  v_mov_b32 v{V_MC+t}, v{a}")
    L.append(f"  v_mul_f32 v{V_L+t}, v{V_L+t}, v{b}")
    for dt in range(8):
        for r in range(4):
            L.append(f"  v_mul_f32 v{Ot(dt,t)+r}, v{Ot(dt,t)+r}, v{b}")
    for kt in range(2):
        for r in range(4):
            L.append(f"  v_fma_f32 v{X+kt*4+r}, v{St(kt,t)+r}, s{S_C}, -v{V_MC+t}")
    L.append(f"  s_branch L_back{tag}")
    return L
def merge(m, v, lead=0):
    res = list(m[:lead]); m = m[lead:]
    if lead: res.append("  s_nop 3")
    n = len(m)
    if n == 0: return res + v
    per = len(v) / n
    vi = 0
    for i, x in enumerate(m):
        res.append(x)
        tgt = int(round(per * (i+1)))
        while vi < tgt: res.append(v[vi]); vi += 1
    res += v[vi:]
    return res
slow_blocks = []
def sm_phase(m, t, tag, lead):
    k = len(m)//3
    for x in merge(m[:k+lead], sm1(t), lead): e(x)
    e(f"  s_cbranch_vccnz L_slow{tag}")
    e(f"L_back{tag}:")
    for x in merge(m[k+lead:], sm2(t), 0): e(x)
    slow_blocks.extend(slow(t, tag))

STAMP = os.environ.get('STAMP')
def stamp(k):
    if not STAMP: return
    e("  s_memtime s[44:45]")
    e(f"  s_lshl_b32 s46, s{S_IT}, 3")
    e(f"  s_add_u32 s46, s46, {k}")
    e("  s_waitcnt lgkmcnt(0)")
    e("  s_mov_b32 s47, m0")
    e("  s_mov_b32 m0, s46")
    e("  s_nop 0")
    e("  v_writelane_b32 v31, s44, m0")
    e("  s_mov_b32 m0, s47")
e("L_loop:")
stamp(0)
e("  s_waitcnt vmcnt(8)")
stamp(1)
for kt in range(2):
    for s in range(4):
        e(f"  ds_read_b128 {r4(Kf(kt,s))}, v{KR+s} offset:{kt*4096}")
e("  s_waitcnt lgkmcnt(0)")
stamp(2)
pre, D = dma_list(1, sK, 0, [KD, KD+1, KD+2, KD+3])
for x in merge_dma(qk(0), pre, D): e(x)
e("  s_nop 3")
def cost(x):
    return 2.0 if 'v_exp' in x else (0.0 if x.startswith('L_') or 'branch' in x else 1.0)
vs = []
for t, tag in enumerate("abc"):
    vs += sm1(t) + [f"  s_cbranch_vccnz L_slow{tag}", f"L_back{tag}:"] + sm2(t)
    slow_blocks.extend(slow(t, tag))
vwait = [f"  s_waitcnt vmcnt(8)"] + [f"  ds_read_b64_tr_b16 {r2(K0+dt*4+kh*2)}, v{VT+dt} offset:{kh*4096}" for dt in range(8) for kh in range(2)]
ms = qk(1) + qk(2) + ["@V"] + pv(0, True) + pv(1)
nm = sum(1 for x in ms if 'mfma' in x)
tot = sum(cost(x) for x in vs)
LEAD = 3
acc = 0.0; vi = 0; mi = 0
for x in ms:
    if x == "@V":
        for y in vwait: e(y)
        continue
    e(x)
    if 'mfma' in x:
        mi += 1
        if mi == LEAD: e("  s_nop 3")
        if mi >= LEAD:
            tgt = tot * (mi - LEAD + 1) / (nm - LEAD + 1)
            while vi < len(vs) and acc < tgt:
                e(vs[vi]); acc += cost(vs[vi]); vi += 1
while vi < len(vs): e(vs[vi]); vi += 1
pre, D = dma_list(1, sV, 8192, [V_E, V_O])
for x in merge_dma(pv(2), pre, D): e(x)
stamp(5)
e(f"  s_add_u32 s{S_IT}, s{S_IT}, 1")
e(f"  s_cmp_lt_u32 s{S_IT}, 8")
e("  s_cbranch_scc1 L_loop")
e("  s_branch L_epi")
for x in slow_blocks: e(x)

e("L_epi:")
if NOEPI: e("  s_endpgm")
stampi(14)
e("  s_waitcnt vmcnt(0)")
for t in range(3):
    a = V_L + t
    e(f"  v_mov_b32 v{T}, v{a}")
    e("  s_nop 1")
    e(f"  v_permlane32_swap_b32 v{a}, v{T}")
    e(f"  v_add_f32 v{a}, v{a}, v{T}")
    e(f"  v_mov_b32 v{T}, v{a}")
    e("  s_nop 1")
    e(f"  v_permlane16_swap_b32 v{a}, v{T}")
    e(f"  v_add_f32 v{a}, v{a}, v{T}")
e("  v_and_b32 v42, 15, v0")
e("  v_lshlrev_b32 v43, 5, v42")
e(f"  s_lshl_b32 s{S_T0}, s{S_W}, 2")
e(f"  s_add_u32 s{S_T0}, s{S_T0}, {LDS_ML}")
e(f"  v_add_u32 v44, s{S_T0}, v43")
for t in range(3):
    e(f"  ds_write_b32 v44, v{V_MC+t} offset:{t*512}")
    e(f"  ds_write_b32 v44, v{V_L+t} offset:{1536+t*512}")
e(f"  v_add_u32 v43, {LDS_ML}, v43")
e("  v_and_b32 v40, 63, v0")
e("  v_lshlrev_b32 v40, 4, v40")
e(f"  v_add_u32 v41, s{S_LDS}, v40")
e("  v_bfe_u32 v45, v0, 4, 2")
e("  v_lshlrev_b32 v42, 8, v42")
e("  v_lshl_add_u32 v42, v45, 3, v42")
for T2 in range(12):
    for h in range(2):
        b0 = O0 + (2*T2+h)*4
        e(f"  v_cvt_pk_bf16_f32 v{64+T2*4+h*2}, v{b0}, v{b0+1}")
        e(f"  v_cvt_pk_bf16_f32 v{64+T2*4+h*2+1}, v{b0+2}, v{b0+3}")
for T2 in range(12):
    e(f"  ds_write_b128 v41, {r4(64+T2*4)} offset:{T2*1024}")
e("  s_waitcnt lgkmcnt(0)")
e("  s_barrier")
e(f"  s_mul_i32 s{S_T1}, s{S_W}, 3")
for k in range(3):
    e(f"  s_add_u32 s{S_T0}, s{S_T1}, {k}")
    e(f"  s_lshr_b32 s{S_T2}, s{S_T0}, 1")
    e(f"  s_lshl_b32 s{S_T2}, s{S_T2}, 10")
    e(f"  s_and_b32 s{S_T0}, s{S_T0}, 1")
    e(f"  s_lshl_b32 s{S_T0}, s{S_T0}, 3")
    e(f"  s_add_u32 s{S_T2}, s{S_T2}, s{S_T0}")
    e(f"  v_add_u32 v44, s{S_T2}, v40")
    e("  v_add_u32 v45, 0x10000, v44")
    e(f"  ds_read_b128 v[48:51], v43 offset:{k*512}")
    e(f"  ds_read_b128 v[52:55], v43 offset:{k*512+16}")
    e(f"  ds_read_b128 v[56:59], v43 offset:{1536+k*512}")
    e(f"  ds_read_b128 v[60:63], v43 offset:{1536+k*512+16}")
    for w in range(8):
        e(f"  ds_read_b64 v[{64+w*2}:{65+w*2}], v{44 if w<4 else 45} offset:{(w%4)*16384}")
    e("  s_waitcnt lgkmcnt(8)")
    e("  v_max3_f32 v47, v48, v49, v50")
    e("  v_max3_f32 v47, v47, v51, v52")
    e("  v_max3_f32 v47, v47, v53, v54")
    e("  v_max_f32 v47, v47, v55")
    for j in range(8):
        e(f"  v_sub_f32 v{48+j}, v{48+j}, v47")
    for j in range(8):
        e(f"  v_exp_f32 v{48+j}, v{48+j}")
    e("  s_nop 0")
    e("  v_mul_f32 v47, v48, v56")
    for j in range(1, 8):
        e(f"  v_fmac_f32 v47, v{48+j}, v{56+j}")
    e("  v_rcp_f32 v47, v47")
    e("  s_waitcnt lgkmcnt(0)")
    for w in range(8):
        for d in range(2):
            src = 64 + w*2 + d
            e(f"  v_lshlrev_b32 v{80+d*2}, 16, v{src}")
            e(f"  v_and_b32 v{81+d*2}, 0xffff0000, v{src}")
        for r in range(4):
            if w == 0: e(f"  v_mul_f32 v{84+r}, v{80+r}, v48")
            else: e(f"  v_fmac_f32 v{84+r}, v{80+r}, v{48+w}")
    for r in range(4):
        e(f"  v_mul_f32 v{84+r}, v{84+r}, v47")
    e("  v_cvt_pk_bf16_f32 v84, v84, v85")
    e("  v_cvt_pk_bf16_f32 v85, v86, v87")
    e(f"  s_lshl_b32 s{S_T2}, s{S_W}, 5")
    e(f"  s_add_u32 s{S_T2}, s{S_T2}, {k*4096}")
    e(f"  buffer_store_dwordx2 v[84:85], v42, s[{sO}:{sO+3}], s{S_T2} offen")
stampi(15)
if STAMP:
    e("  s_cmp_lg_u32 s2, 8")
    e("  s_cbranch_scc1 L_nost")
    e(f"  s_cmp_lg_u32 s{S_W}, {os.environ.get('STW','1')}")
    e("  s_cbranch_scc1 L_nost")
    e("  s_load_dwordx2 s[44:45], s[0:1], 32")
    e("  s_waitcnt lgkmcnt(0)")
    e("  s_mov_b32 s46, 256"); e("  s_mov_b32 s47, 0x00020000")
    e("  v_and_b32 v42, 63, v0"); e("  v_lshlrev_b32 v42, 2, v42")
    e("  buffer_store_dword v31, v42, s[44:47], 0 offen")
    e("L_nost:")
e("L_end:")
e("  s_endpgm")
e('.section .rodata,"a"')
e(".p2align 6")
e(".amdhsa_kernel standalone__gqa_softmax__near_ridge_kernel")
e("  .amdhsa_next_free_vgpr 256")
e("  .amdhsa_next_free_sgpr 48")
e("  .amdhsa_accum_offset 256")
e("  .amdhsa_group_segment_fixed_size 0")
e("  .amdhsa_kernarg_size 48")
e("  .amdhsa_user_sgpr_count 2")
e("  .amdhsa_user_sgpr_kernarg_segment_ptr 1")
e("  .amdhsa_system_sgpr_workgroup_id_x 1")
e(".end_amdhsa_kernel")
hdr = open("standalone__gqa_softmax__near_ridge.s.ref").read().split("; Override")[0]
open(sys.argv[1], "w").write(hdr + "\n".join(x for x in out if x is not None) + "\n")
```

```python
import sys, os, math, struct
FL = os.environ.get('FL', '')
NOEPI = os.environ.get('NOEPI'); NOLOOP = os.environ.get('NOLOOP')
out = []
def e(s=""): out.append(s)

O0, Q0, K0, S0, P0, F0 = 160, 112, 80, 56, 44, 32
NF = 3
V_E, V_O = 1, 2
KD = 3
KR = 7
VT = 11
V_MC = 19
V_L = 22
T = 25
def Ot(dt, t): return O0 + (dt*3+t)*4
def Qf(t, s): return Q0 + (t*4+s)*4
def Kf(kt, s): return K0 + (kt*4+s)*4
def St(kt, t): return S0 + (kt*3+t)*4
def Pf(t): return P0 + t*4
def r4(b): return f"v[{b}:{b+3}]"
def r2(b): return f"v[{b}:{b+1}]"
sQ, sK, sV, sO = 12, 16, 20, 24
S_W, S_H, S_C, S_LDS, S_IT, S_WOFF = 28, 29, 31, 32, 33, 30
S_T0, S_T1, S_T2, S_T3 = 34, 35, 36, 42
LDS_Q = 131072
LDS_ML = 131072 + 12288
C = (128 ** -0.5) * math.log2(math.e)
def fbits(f): return "0x%08x" % struct.unpack("<I", struct.pack("<f", f))[0]

e("; @launch grid=(256,1,1) block=(512,1,1) lds=147456")
e('.amdgcn_target "amdgcn-amd-amdhsa--gfx950"')
e(".text")
e(".globl standalone__gqa_softmax__near_ridge_kernel")
e(".p2align 8")
e(".type standalone__gqa_softmax__near_ridge_kernel,@function")
e("standalone__gqa_softmax__near_ridge_kernel:")
e("  s_cmp_ge_u32 s2, 256")
e("  s_cbranch_scc1 L_end")
e("  s_load_dwordx8 s[4:11], s[0:1], 0")
def stampi(idx):
    if not os.environ.get('STAMP'): return
    e("  s_memtime s[44:45]")
    e("  s_waitcnt lgkmcnt(0)")
    e(f"  v_writelane_b32 v31, s44, {idx}")
stampi(6)
if os.environ.get('CPF', '1') == '1':
    e("  s_getpc_b64 s[44:45]")
    e("L_pc0:")
    e("  v_and_b32 v40, 63, v0")
    e("  v_lshlrev_b32 v40, 7, v40")
    e("  v_min_u32 v40, L_codeend-L_pc0, v40")
    e("  v_mov_b32 v41, s45")
    e("  v_add_co_u32 v40, vcc, s44, v40")
    e("  v_addc_co_u32 v41, vcc, 0, v41, vcc")
    e("  global_load_dword v33, v[40:41], off")
e("  v_and_b32 v40, 63, v0")
e("  v_lshrrev_b32 v41, 6, v0")
e("  s_nop 0")
e(f"  v_readfirstlane_b32 s{S_W}, v41")
e("  s_and_b32 s37, s2, 7")
e("  s_lshr_b32 s38, s2, 3")
e("  s_lshr_b32 s39, s38, 3")
e("  s_lshl_b32 s37, s37, 2")
e("  s_add_u32 s37, s37, s39")
e(f"  s_and_b32 s{S_H}, s38, 7")
e("  s_lshl_b32 s39, s37, 3")
e(f"  s_add_u32 s39, s39, s{S_H}")
e("  s_mul_i32 s40, s39, 12288")
e("  s_lshl_b32 s41, s37, 19")
e("  v_and_b32 v42, 15, v40")
e("  v_lshrrev_b32 v43, 4, v40")
e("  v_lshlrev_b32 v44, 1, v43")
e("  v_xor_b32 v45, v42, v44")
e("  v_lshlrev_b32 v46, 8, v43")
e(f"  v_lshl_add_u32 v{V_E}, v45, 4, v46")
e("  v_xor_b32 v45, 8, v45")
e(f"  v_lshl_add_u32 v{V_O}, v45, 4, v46")
for jj in range(4):
    e(f"  v_add_u32 v45, {4*jj}, v43")
    e("  v_xor_b32 v45, v42, v45")
    e(f"  v_lshl_add_u32 v{KD+jj}, v45, 4, v46")
e(f"  s_lshl_b32 s{S_LDS}, s{S_W}, 14")
e("  v_lshlrev_b32 v46, 8, v42")
e(f"  v_add_u32 v47, s{S_LDS}, v46")
for s in range(4):
    e(f"  v_add_u32 v45, {4*s}, v43")
    e("  v_xor_b32 v45, v42, v45")
    e(f"  v_lshl_add_u32 v{KR+s}, v45, 4, v47")
e("  v_lshrrev_b32 v44, 2, v42")
e("  v_and_b32 v45, 3, v42")
e("  v_lshl_add_u32 v46, v43, 2, v44")
e("  v_and_b32 v47, 7, v46")
e("  v_lshlrev_b32 v48, 8, v46")
e("  v_lshrrev_b32 v49, 1, v45")
e("  v_lshl_add_u32 v48, v49, 4, v48")
e("  v_and_b32 v49, 1, v45")
e("  v_lshl_add_u32 v48, v49, 3, v48")
e(f"  s_add_u32 s{S_T0}, s{S_LDS}, 8192")
e(f"  v_add_u32 v48, s{S_T0}, v48")
for dt in range(8):
    e(f"  v_xor_b32 v49, {dt}, v47")
    e(f"  v_lshl_add_u32 v{VT+dt}, v49, 5, v48")
e("  s_waitcnt lgkmcnt(0)")
stampi(22)
e(f"  s_add_u32 s{sQ}, s4, s40"); e(f"  s_addc_u32 s{sQ+1}, s5, 0"); e(f"  s_mov_b32 s{sQ+2}, 12288"); e(f"  s_mov_b32 s{sQ+3}, 0x00020000")
e(f"  s_add_u32 s{sK}, s6, s41"); e(f"  s_addc_u32 s{sK+1}, s7, 0"); e(f"  s_mov_b32 s{sK+2}, 524288"); e(f"  s_mov_b32 s{sK+3}, 0x00020000")
e(f"  s_add_u32 s{sV}, s8, s41"); e(f"  s_addc_u32 s{sV+1}, s9, 0"); e(f"  s_mov_b32 s{sV+2}, 524288"); e(f"  s_mov_b32 s{sV+3}, 0x00020000")
e(f"  s_add_u32 s{sO}, s10, s40"); e(f"  s_addc_u32 s{sO+1}, s11, 0"); e(f"  s_mov_b32 s{sO+2}, 12288"); e(f"  s_mov_b32 s{sO+3}, 0x00020000")
e(f"  s_lshl_b32 s{S_WOFF}, s{S_W}, 16")
ROT = int(os.environ.get('ROT', '8'))
if ROT == 1: e(f"  s_mov_b32 s{S_H}, 0")
elif ROT == 2: e(f"  s_and_b32 s{S_H}, s{S_H}, 1"); e(f"  s_lshl_b32 s{S_H}, s{S_H}, 2")
elif ROT == 4: e(f"  s_and_b32 s{S_H}, s{S_H}, 3"); e(f"  s_lshl_b32 s{S_H}, s{S_H}, 1")
e(f"  s_mov_b32 s{S_C}, {fbits(C)}")

def tile_soff(delta):
    e(f"  s_add_u32 s{S_T3}, s{S_IT}, s{S_H}")
    if delta: e(f"  s_add_u32 s{S_T3}, s{S_T3}, {delta}")
    e(f"  s_and_b32 s{S_T3}, s{S_T3}, 7")
    e(f"  s_lshl_b32 s{S_T3}, s{S_T3}, 13")
    e(f"  s_add_u32 s{S_T3}, s{S_T3}, s{S_WOFF}")

def dma_tile(srd, ldsoff, vregs):
    e(f"  s_add_u32 s{S_T1}, s{S_LDS}, {ldsoff}")
    e(f"  s_mov_b32 m0, s{S_T1}")
    e(f"  s_add_u32 s{S_T0}, s{S_T3}, 4096")
    for j in range(4):
        e(f"  buffer_load_dwordx4 v{vregs[j % len(vregs)]}, s[{srd}:{srd+3}], s{S_T3} offen offset:{j*1024} {FL} lds")
    e(f"  s_add_u32 s{S_T1}, s{S_T1}, 4096")
    e(f"  s_mov_b32 m0, s{S_T1}")
    e("  s_nop 0")
    for j in range(4):
        e(f"  buffer_load_dwordx4 v{vregs[j % len(vregs)]}, s[{srd}:{srd+3}], s{S_T0} offen offset:{j*1024} {FL} lds")
def load_K(delta):
    tile_soff(delta); dma_tile(sK, 0, [KD, KD+1, KD+2, KD+3])
def load_V(delta):
    tile_soff(delta); dma_tile(sV, 8192, [V_E, V_O])

def dma_list(delta, srd, ldsoff, vregs):
    L = []
    L.append(f"  s_add_u32 s{S_T3}, s{S_IT}, s{S_H}")
    L.append(f"  s_add_u32 s{S_T3}, s{S_T3}, {delta}")
    L.append(f"  s_and_b32 s{S_T3}, s{S_T3}, 7")
    L.append(f"  s_lshl_b32 s{S_T3}, s{S_T3}, 13")
    L.append(f"  s_add_u32 s{S_T3}, s{S_T3}, s{S_WOFF}")
    L.append(f"  s_cmp_lt_u32 s{S_IT}, 7")
    L.append(f"  s_cselect_b32 s{srd+2}, 524288, 0")
    L.append(f"  s_add_u32 s{S_T1}, s{S_LDS}, {ldsoff}")
    L.append(f"  s_mov_b32 m0, s{S_T1}")
    L.append(f"  s_add_u32 s{S_T0}, s{S_T3}, 4096")
    pre = list(L); D = []
    for j in range(4):
        D.append([f"  buffer_load_dwordx4 v{vregs[j % len(vregs)]}, s[{srd}:{srd+3}], s{S_T3} offen offset:{j*1024} {FL} lds"])
    for j in range(4):
        x = []
        if j == 0:
            x += [f"  s_add_u32 s{S_T1}, s{S_T1}, 4096", f"  s_mov_b32 m0, s{S_T1}", "  s_nop 0"]
        x.append(f"  buffer_load_dwordx4 v{vregs[j % len(vregs)]}, s[{srd}:{srd+3}], s{S_T0} offen offset:{j*1024} {FL} lds")
        D.append(x)
    if os.environ.get('NODMA'): D = []
    return pre, D
def merge_dma(m, pre, D):
    res = list(pre)
    n = len(m)
    if os.environ.get('NOMFMA'): m = [x for x in m if 'mfma' not in x] + ["  s_nop 0"]*8
    for i, x in enumerate(m):
        res.append(x)
        k0 = i * len(D) // n; k1 = (i+1) * len(D) // n
        for k in range(k0, k1): res += D[k]
    return res
e(f"  s_mov_b32 s{S_IT}, 0")
e(f"  v_mov_b32 v40, 0")
e(f"  buffer_load_dword v34, v40, s[{sO}:{sO+3}], 0 offen")
e(f"  s_cmp_ge_u32 s{S_W}, 4")
e("  s_cbranch_scc1 L_pB")
load_K(0)
load_V(0)
e("  s_branch L_noq")
e("L_pB:")
e(f"  s_cmp_lt_u32 s{S_W}, 5")
e("  s_cbranch_scc1 L_pB2")
e(f"  s_sub_u32 s{S_T2}, s{S_W}, 5")
e(f"  s_lshl_b32 s{S_T0}, s{S_T2}, 12")
e(f"  s_add_u32 s{S_T1}, s{S_T0}, {LDS_Q}")
e(f"  s_mov_b32 m0, s{S_T1}")
e("  s_nop 0")
for j in range(4):
    e(f"  buffer_load_dwordx4 v{KD+j}, s[{sQ}:{sQ+3}], s{S_T0} offen offset:{j*1024} lds")
e("L_pB2:")
load_V(0)
load_K(0)
e("L_noq:")
stampi(23)
for i in range(96):
    e(f"  v_mov_b32 v{O0+i}, 0")
for t in range(3):
    e(f"  v_mov_b32 v{V_MC+t}, 0xff800000")
    e(f"  v_mov_b32 v{V_L+t}, 0")
e(f"  s_sub_u32 s{S_T0}, {LDS_Q}, s{S_LDS}")
for s in range(4):
    e(f"  v_add_u32 v{40+s}, s{S_T0}, v{KR+s}")
stampi(30)
e("  s_waitcnt vmcnt(0)")
stampi(31)
e("  s_barrier")
stampi(38)
for t in range(3):
    for s in range(4):
        e(f"  ds_read_b128 {r4(Qf(t,s))}, v{40+s} offset:{t*4096}")
e("  s_waitcnt lgkmcnt(0)")
stampi(7)
if os.environ.get('PRIO'):
    e(f"  s_cmp_lt_u32 s{S_W}, 4")
    e("  s_cbranch_scc1 L_noprio")
    e("  s_setprio 1")
    e("L_noprio:")
if NOLOOP: e("  s_branch L_epi")


X = F0
TM = 25
def qk(t):
    L = []
    for s in range(4):
        for kt in range(2):
            c = "0" if s == 0 else r4(St(kt,t))
            L.append(f"  v_mfma_f32_16x16x32_bf16 {r4(St(kt,t))}, {r4(Kf(kt,s))}, {r4(Qf(t,s))}, {c}")
    return L
def pv(t, waits=False):
    L = []
    for dt in range(8):
        if waits: L.append(f"  s_waitcnt lgkmcnt({(7-dt)*2})")
        L.append(f"  v_mfma_f32_16x16x32_bf16 {r4(Ot(dt,t))}, {r4(K0+dt*4)}, {r4(Pf(t))}, {r4(Ot(dt,t))}")
    return L
def sm1(t):
    L = []
    for kt in range(2):
        for r in range(4):
            L.append(f"  v_fma_f32 v{X+kt*4+r}, v{St(kt,t)+r}, s{S_C}, -v{V_MC+t}")
    L.append(f"  v_max3_f32 v{TM}, v{X}, v{X+1}, v{X+2}")
    L.append(f"  v_max3_f32 v{TM+1}, v{X+3}, v{X+4}, v{X+5}")
    L.append(f"  v_max3_f32 v{TM}, v{TM}, v{X+6}, v{X+7}")
    L.append(f"  v_max_f32 v{TM}, v{TM}, v{TM+1}")
    L.append(f"  v_cmp_lt_f32 vcc, 0x41000000, v{TM}")
    return L
def sm2(t):
    L = []
    for k in range(8):
        L.append(f"  v_exp_f32 v{X+k}, v{X+k}")
    L.append(f"  v_add_f32 v{TM}, v{X}, v{X+1}")
    L.append(f"  v_add_f32 v{TM+1}, v{X+2}, v{X+3}")
    L.append(f"  v_add_f32 v{TM+2}, v{X+4}, v{X+5}")
    L.append(f"  v_add_f32 v{TM+3}, v{X+6}, v{X+7}")
    L.append(f"  v_cvt_pk_bf16_f32 v{Pf(t)}, v{X}, v{X+1}")
    L.append(f"  v_cvt_pk_bf16_f32 v{Pf(t)+1}, v{X+2}, v{X+3}")
    L.append(f"  v_add_f32 v{TM}, v{TM}, v{TM+1}")
    L.append(f"  v_add_f32 v{TM+2}, v{TM+2}, v{TM+3}")
    L.append(f"  v_cvt_pk_bf16_f32 v{Pf(t)+2}, v{X+4}, v{X+5}")
    L.append(f"  v_cvt_pk_bf16_f32 v{Pf(t)+3}, v{X+6}, v{X+7}")
    L.append(f"  v_add_f32 v{TM}, v{TM}, v{TM+2}")
    L.append(f"  v_add_f32 v{V_L+t}, v{V_L+t}, v{TM}")
    return L
def slow(t, tag):
    L = [f"L_slow{tag}:"]
    a = TM+1; b = TM
    L.append(f"  v_max3_f32 v{a}, v{St(0,t)}, v{St(0,t)+1}, v{St(0,t)+2}")
    L.append(f"  v_max3_f32 v{a}, v{a}, v{St(0,t)+3}, v{St(1,t)}")
    L.append(f"  v_max3_f32 v{a}, v{a}, v{St(1,t)+1}, v{St(1,t)+2}")
    L.append(f"  v_max_f32 v{a}, v{a}, v{St(1,t)+3}")
    L.append(f"  v_mov_b32 v{b}, v{a}")
    L.append("  s_nop 1")
    L.append(f"  v_permlane32_swap_b32 v{a}, v{b}")
    L.append(f"  v_max_f32 v{a}, v{a}, v{b}")
    L.append(f"  v_mov_b32 v{b}, v{a}")
    L.append("  s_nop 1")
    L.append(f"  v_permlane16_swap_b32 v{a}, v{b}")
    L.append(f"  v_max_f32 v{a}, v{a}, v{b}")
    L.append(f"  v_mul_f32 v{a}, s{S_C}, v{a}")
    L.append(f"  v_max_f32 v{a}, v{a}, v{V_MC+t}")
    L.append(f"  v_sub_f32 v{b}, v{V_MC+t}, v{a}")
    L.append(f"  v_exp_f32 v{b}, v{b}")
    L.append(f"  v_mov_b32 v{V_MC+t}, v{a}")
    L.append(f"  v_mul_f32 v{V_L+t}, v{V_L+t}, v{b}")
    for dt in range(8):
        for r in range(4):
            L.append(f"  v_mul_f32 v{Ot(dt,t)+r}, v{Ot(dt,t)+r}, v{b}")
    for kt in range(2):
        for r in range(4):
            L.append(f"  v_fma_f32 v{X+kt*4+r}, v{St(kt,t)+r}, s{S_C}, -v{V_MC+t}")
    L.append(f"  s_branch L_back{tag}")
    return L
def merge(m, v, lead=0):
    res = list(m[:lead]); m = m[lead:]
    if lead: res.append("  s_nop 3")
    n = len(m)
    if n == 0: return res + v
    per = len(v) / n
    vi = 0
    for i, x in enumerate(m):
        res.append(x)
        tgt = int(round(per * (i+1)))
        while vi < tgt: res.append(v[vi]); vi += 1
    res += v[vi:]
    return res
slow_blocks = []
def sm_phase(m, t, tag, lead):
    k = len(m)//3
    for x in merge(m[:k+lead], sm1(t), lead): e(x)
    e(f"  s_cbranch_vccnz L_slow{tag}")
    e(f"L_back{tag}:")
    for x in merge(m[k+lead:], sm2(t), 0): e(x)
    slow_blocks.extend(slow(t, tag))

STAMP = os.environ.get('STAMP')
def stamp(k):
    if not STAMP: return
    e("  s_memtime s[44:45]")
    e(f"  s_lshl_b32 s46, s{S_IT}, 3")
    e(f"  s_add_u32 s46, s46, {k}")
    e("  s_waitcnt lgkmcnt(0)")
    e("  s_mov_b32 s47, m0")
    e("  s_mov_b32 m0, s46")
    e("  s_nop 0")
    e("  v_writelane_b32 v31, s44, m0")
    e("  s_mov_b32 m0, s47")
e("L_loop:")
stamp(0)
e("  s_waitcnt vmcnt(8)")
stamp(1)
for kt in range(2):
    for s in range(4):
        e(f"  ds_read_b128 {r4(Kf(kt,s))}, v{KR+s} offset:{kt*4096}")
e("  s_waitcnt lgkmcnt(0)")
stamp(2)
pre, D = dma_list(1, sK, 0, [KD, KD+1, KD+2, KD+3])
for x in merge_dma(qk(0), pre, D): e(x)
e("  s_nop 3")
def cost(x):
    return 2.0 if 'v_exp' in x else (0.0 if x.startswith('L_') or 'branch' in x else 1.0)
vs = []
for t, tag in enumerate("abc"):
    vs += sm1(t) + [f"  s_cbranch_vccnz L_slow{tag}", f"L_back{tag}:"] + sm2(t)
    slow_blocks.extend(slow(t, tag))
vwait = [f"  s_waitcnt vmcnt(8)"] + [f"  ds_read_b64_tr_b16 {r2(K0+dt*4+kh*2)}, v{VT+dt} offset:{kh*4096}" for dt in range(8) for kh in range(2)]
ms = qk(1) + qk(2) + ["@V"] + pv(0, True) + pv(1)
nm = sum(1 for x in ms if 'mfma' in x)
tot = sum(cost(x) for x in vs)
LEAD = 3
acc = 0.0; vi = 0; mi = 0
for x in ms:
    if x == "@V":
        for y in vwait: e(y)
        continue
    e(x)
    if 'mfma' in x:
        mi += 1
        if mi == LEAD: e("  s_nop 3")
        if mi >= LEAD:
            tgt = tot * (mi - LEAD + 1) / (nm - LEAD + 1)
            while vi < len(vs) and acc < tgt:
                e(vs[vi]); acc += cost(vs[vi]); vi += 1
while vi < len(vs): e(vs[vi]); vi += 1
pre, D = dma_list(1, sV, 8192, [V_E, V_O])
for x in merge_dma(pv(2), pre, D): e(x)
stamp(5)
e(f"  s_add_u32 s{S_IT}, s{S_IT}, 1")
e(f"  s_cmp_lt_u32 s{S_IT}, 8")
e("  s_cbranch_scc1 L_loop")

e("L_epi:")
if NOEPI: e("  s_endpgm")
stampi(14)
e("  s_waitcnt vmcnt(0)")
for t in range(3):
    a = V_L + t
    e(f"  v_mov_b32 v{T}, v{a}")
    e("  s_nop 1")
    e(f"  v_permlane32_swap_b32 v{a}, v{T}")
    e(f"  v_add_f32 v{a}, v{a}, v{T}")
    e(f"  v_mov_b32 v{T}, v{a}")
    e("  s_nop 1")
    e(f"  v_permlane16_swap_b32 v{a}, v{T}")
    e(f"  v_add_f32 v{a}, v{a}, v{T}")
e("  v_and_b32 v42, 15, v0")
e("  v_lshlrev_b32 v43, 5, v42")
e(f"  s_lshl_b32 s{S_T0}, s{S_W}, 2")
e(f"  s_add_u32 s{S_T0}, s{S_T0}, {LDS_ML}")
e(f"  v_add_u32 v44, s{S_T0}, v43")
for t in range(3):
    e(f"  ds_write_b32 v44, v{V_MC+t} offset:{t*512}")
    e(f"  ds_write_b32 v44, v{V_L+t} offset:{1536+t*512}")
e(f"  v_add_u32 v43, {LDS_ML}, v43")
e("  v_and_b32 v40, 63, v0")
e("  v_lshlrev_b32 v40, 4, v40")
e(f"  v_add_u32 v41, s{S_LDS}, v40")
e("  v_bfe_u32 v45, v0, 4, 2")
e("  v_lshlrev_b32 v42, 8, v42")
e("  v_lshl_add_u32 v42, v45, 3, v42")
for T2 in range(12):
    for h in range(2):
        b0 = O0 + (2*T2+h)*4
        e(f"  v_cvt_pk_bf16_f32 v{64+T2*4+h*2}, v{b0}, v{b0+1}")
        e(f"  v_cvt_pk_bf16_f32 v{64+T2*4+h*2+1}, v{b0+2}, v{b0+3}")
for T2 in range(12):
    e(f"  ds_write_b128 v41, {r4(64+T2*4)} offset:{T2*1024}")
e("  s_waitcnt lgkmcnt(0)")
e("  s_barrier")
e(f"  s_mul_i32 s{S_T1}, s{S_W}, 3")
e(f"  s_lshl_b32 s{S_T3}, s{S_W}, 5")
e(f"  s_mov_b32 s{S_IT}, 0")
e("L_ek:")
e(f"  s_lshr_b32 s{S_T2}, s{S_T1}, 1")
e(f"  s_lshl_b32 s{S_T2}, s{S_T2}, 10")
e(f"  s_and_b32 s{S_T0}, s{S_T1}, 1")
e(f"  s_lshl_b32 s{S_T0}, s{S_T0}, 3")
e(f"  s_add_u32 s{S_T2}, s{S_T2}, s{S_T0}")
e(f"  v_add_u32 v44, s{S_T2}, v40")
e("  v_add_u32 v45, 0x10000, v44")
e(f"  ds_read_b128 v[48:51], v43")
e(f"  ds_read_b128 v[52:55], v43 offset:16")
e(f"  ds_read_b128 v[56:59], v43 offset:1536")
e(f"  ds_read_b128 v[60:63], v43 offset:1552")
for w in range(8):
    e(f"  ds_read_b64 v[{64+w*2}:{65+w*2}], v{44 if w<4 else 45} offset:{(w%4)*16384}")
e("  v_add_u32 v43, 512, v43")
e("  s_waitcnt lgkmcnt(8)")
e("  v_max3_f32 v47, v48, v49, v50")
e("  v_max3_f32 v47, v47, v51, v52")
e("  v_max3_f32 v47, v47, v53, v54")
e("  v_max_f32 v47, v47, v55")
for j in range(8):
    e(f"  v_sub_f32 v{48+j}, v{48+j}, v47")
for j in range(8):
    e(f"  v_exp_f32 v{48+j}, v{48+j}")
e("  s_nop 0")
e("  v_mul_f32 v47, v48, v56")
for j in range(1, 8):
    e(f"  v_fmac_f32 v47, v{48+j}, v{56+j}")
e("  v_rcp_f32 v47, v47")
e("  s_waitcnt lgkmcnt(0)")
for w in range(8):
    for d in range(2):
        src = 64 + w*2 + d
        e(f"  v_lshlrev_b32 v{80+d*2}, 16, v{src}")
        e(f"  v_and_b32 v{81+d*2}, 0xffff0000, v{src}")
    for r in range(4):
        if w == 0: e(f"  v_mul_f32 v{84+r}, v{80+r}, v48")
        else: e(f"  v_fmac_f32 v{84+r}, v{80+r}, v{48+w}")
for r in range(4):
    e(f"  v_mul_f32 v{84+r}, v{84+r}, v47")
e("  v_cvt_pk_bf16_f32 v84, v84, v85")
e("  v_cvt_pk_bf16_f32 v85, v86, v87")
e(f"  buffer_store_dwordx2 v[84:85], v42, s[{sO}:{sO+3}], s{S_T3} offen")
e(f"  s_add_u32 s{S_T3}, s{S_T3}, 4096")
e(f"  s_add_u32 s{S_T1}, s{S_T1}, 1")
e(f"  s_add_u32 s{S_IT}, s{S_IT}, 1")
e(f"  s_cmp_lt_u32 s{S_IT}, 3")
e("  s_cbranch_scc1 L_ek")
stampi(15)
if STAMP:
    e("  s_cmp_lg_u32 s2, 8")
    e("  s_cbranch_scc1 L_nost")
    e(f"  s_cmp_lg_u32 s{S_W}, {os.environ.get('STW','1')}")
    e("  s_cbranch_scc1 L_nost")
    e("  s_load_dwordx2 s[44:45], s[0:1], 32")
    e("  s_waitcnt lgkmcnt(0)")
    e("  s_mov_b32 s46, 256"); e("  s_mov_b32 s47, 0x00020000")
    e("  v_and_b32 v42, 63, v0"); e("  v_lshlrev_b32 v42, 2, v42")
    e("  buffer_store_dword v31, v42, s[44:47], 0 offen")
    e("L_nost:")
e("L_end:")
e("  s_endpgm")
for x in slow_blocks: e(x)
e("L_codeend:")
e("  s_endpgm")
e('.section .rodata,"a"')
e(".p2align 6")
e(".amdhsa_kernel standalone__gqa_softmax__near_ridge_kernel")
e("  .amdhsa_next_free_vgpr 256")
e("  .amdhsa_next_free_sgpr 48")
e("  .amdhsa_accum_offset 256")
e("  .amdhsa_group_segment_fixed_size 0")
e("  .amdhsa_kernarg_size 48")
e("  .amdhsa_user_sgpr_count 2")
e("  .amdhsa_user_sgpr_kernarg_segment_ptr 1")
e("  .amdhsa_system_sgpr_workgroup_id_x 1")
e(".end_amdhsa_kernel")
hdr = open("standalone__gqa_softmax__near_ridge.s.ref").read().split("; Override")[0]
open(sys.argv[1], "w").write(hdr + "\n".join(x for x in out if x is not None) + "\n")
```
